```python
import torch

def _softmax(x, axis=-1):
    return torch.softmax(x, dim=axis)
def _gelu(x):
    return torch.nn.functional.gelu(x, approximate="tanh")
def _silu(x):
    return torch.nn.functional.silu(x)
def _sigmoid(x):
    return torch.sigmoid(x)
def _layernorm(x, axis=-1, eps=1e-5):
    m = x.mean(dim=axis, keepdim=True)
    v = x.var(dim=axis, keepdim=True, unbiased=False)
    return (x - m) / torch.sqrt(v + eps)
def _scatter_add(tgt, idx, src, axis=0):
    return tgt.clone().index_add_(axis, idx, src)
def _segment_sum(src, seg, n):
    out = torch.zeros((n,) + src.shape[1:], dtype=src.dtype)
    return out.index_add_(0, seg, src)
def _pad(x, pw):
    flat = tuple(v for pair in reversed(pw) for v in pair)
    return torch.nn.functional.pad(x, flat)

kernel_name = 'recurrent_scan__sliding_block_cached__geglu_ffn__decode'

def setup_inputs():

    _w = (lambda a: (lambda t: t.to(torch.bfloat16) if t.is_floating_point() else t)(torch.as_tensor(a)))
    def _A_setup():
        B, Sq, D = 4, 1, 576
        Hq, Hkv, Sk, Dh = 32, 16, 8192, 128
        assert Hq % Hkv == 0, (Hq, Hkv)
        return {
            "x": _w((lambda *s: torch.randn(*s, dtype=torch.bfloat16) * 0.05)(B, Sq, D)),
            "k_cache": _w((lambda *s: torch.randn(*s, dtype=torch.bfloat16) * 0.8)(B, Hkv, Sk, Dh)),
            "v_cache": _w((lambda *s: torch.randn(*s, dtype=torch.bfloat16) * 0.2)(B, Hkv, Sk, Dh)),
            "wq": _w((lambda *s: torch.randn(*s, dtype=torch.bfloat16) * 0.8)(D, Hq * Dh) * (D ** -0.5)),
            "wo": _w((lambda *s: torch.randn(*s, dtype=torch.bfloat16) * 0.2)(Hq * Dh, D) * ((Hq * Dh) ** -0.5)),
        }
    _A_in = _A_setup()

    def _B_setup():
        B, S, D, F = 4, 1, 576, 4608
        return {
            "x": _w((lambda *s: torch.randn(*s, dtype=torch.bfloat16) * 0.05)(B, S, D)),
            "w_gate": _w((lambda *s: torch.randn(*s, dtype=torch.bfloat16) * 0.1)(D, F)),
            "w_up": _w((lambda *s: torch.randn(*s, dtype=torch.bfloat16) * 0.1)(D, F)),
            "w_down": _w((lambda *s: torch.randn(*s, dtype=torch.bfloat16) * 0.1)(F, D)),
        }
    _B_in = _B_setup()

    return {
        "A_x": _A_in["x"],
        "A_k_cache": _A_in["k_cache"],
        "A_v_cache": _A_in["v_cache"],
        "A_wq": _A_in["wq"],
        "A_wo": _A_in["wo"],
        "B_x": _B_in["x"],
        "B_w_gate": _B_in["w_gate"],
        "B_w_up": _B_in["w_up"],
        "B_w_down": _B_in["w_down"],
    }

def reference(A_x, A_k_cache, A_v_cache, A_wq, A_wo, B_x, B_w_gate, B_w_up, B_w_down):
    def _A_ref(x, k_cache, v_cache, wq, wo):
        B, Sq, D = x.shape
        Hq, Dh = 32, 128
        Hkv, Sk = k_cache.shape[1], k_cache.shape[2]
        W = min(4096, max(256, Sk // 4))
        rep = Hq // Hkv
        q = (lambda x, *d: x.permute(*d))((x @ wq).reshape(B, Sq, Hq, Dh), 0, 2, 1, 3)
        k = (lambda x, n, axis: torch.repeat_interleave(x, n, dim=axis))(k_cache[:, :, Sk - W:, :], rep, axis=1)
        v = (lambda x, n, axis: torch.repeat_interleave(x, n, dim=axis))(v_cache[:, :, Sk - W:, :], rep, axis=1)
        scores = torch.einsum("bhqd,bhkd->bhqk", q, k) * (Dh ** -0.5)
        p = _softmax(scores, axis=-1)
        o = torch.einsum("bhqk,bhkd->bhqd", p, v)
        return (lambda x, *d: x.permute(*d))(o, 0, 2, 1, 3).reshape(B, Sq, Hq * Dh) @ wo

    def _B_ref(x, w_gate, w_up, w_down):
        return (_gelu(x @ w_gate) * (x @ w_up)) @ w_down

    x = A_x
    xn = _layernorm(x, axis=-1)
    s = _A_ref(xn, A_k_cache, A_v_cache, A_wq, A_wo)
    g = _silu(_B_ref(xn, B_w_gate, B_w_up, B_w_down))
    return x + s * g
```

```python
import re
TRANS = ("v_exp_f32", "v_log_f32", "v_rcp_f32", "v_rsq_f32", "v_sqrt_f32", "v_sin_f32", "v_cos_f32")
def regs(tok):
    tok = tok.strip()
    tok = tok.lstrip('-')
    m = re.fullmatch(r"abs\((.*)\)", tok)
    if m: tok = m.group(1)
    m = re.fullmatch(r"([vsa])\[(\d+):(\d+)\]", tok)
    if m: return [(m.group(1), i) for i in range(int(m.group(2)), int(m.group(3)) + 1)]
    m = re.fullmatch(r"([vsa])(\d+)", tok)
    if m: return [(m.group(1), int(m.group(2)))]
    if tok == "vcc": return [("s", 106), ("s", 107)]
    if tok == "exec": return [("s", 126), ("s", 127)]
    return []
class Ins:
    def __init__(s, text):
        s.text = text
        t = text.split(";")[0].strip()
        s.label = t.endswith(":")
        s.op = t.split()[0] if t else ""
        rest = t[len(s.op):].strip()
        ops = [o.strip() for o in re.split(r",\s*(?![^\[]*\])", rest)] if rest else []
        if ops:
            parts = ops[-1].split()
            ops[-1] = parts[0]; s.mods = parts[1:]
        else: s.mods = []
        s.ops = ops
        op = s.op
        s.valu = op.startswith("v_") and not op.startswith("v_mfma")
        s.mfma = op.startswith("v_mfma")
        s.vmem = op.startswith(("buffer_", "global_"))
        s.ds = op.startswith("ds_")
        s.salu = op.startswith("s_")
        s.dpp = "_dpp" in op
        s.trans = op.split("_e")[0] in TRANS or op in TRANS
        s.dst = []; s.src = []
        R = [regs(o) for o in ops]
        if s.mfma:
            s.dst = R[0]; s.srcA = R[1]; s.srcB = R[2]; s.srcC = R[3]; s.src = R[1] + R[2] + R[3]
        elif s.valu:
            if op.startswith("v_cmp"):
                s.dst = R[0]; s.src = sum(R[1:], [])
            elif op.startswith("v_permlane"):
                s.dst = R[0] + R[1]; s.src = R[0] + R[1]
            elif op.startswith(("v_add_co", "v_sub_co", "v_addc_co")):
                s.dst = R[0] + R[1]; s.src = sum(R[2:], [])
            else:
                s.dst = R[0]; s.src = sum(R[1:], [])
                if op.startswith(("v_fmac", "v_writelane")) or s.dpp: s.src = s.src + R[0]
        elif s.vmem:
            if "load" in op and "lds" not in s.mods: s.dst = R[0]; s.src = sum(R[1:], [])
            else: s.src = sum(R, []); s.data = R[0]
        elif s.ds:
            if op.startswith(("ds_read", "ds_bpermute", "ds_swizzle", "ds_permute")): s.dst = R[0]; s.src = sum(R[1:], [])
            else: s.src = sum(R, [])
        elif s.salu and ops:
            if op.startswith(("s_cmp", "s_cbranch", "s_branch", "s_waitcnt", "s_nop", "s_setprio", "s_sleep", "s_barrier")): s.src = sum(R, [])
            else: s.dst = R[0]; s.src = sum(R[1:], [])
    def states(s):
        if s.label or not s.op or s.op.startswith("."): return 0
        if s.op == "s_nop": return int(s.ops[0]) + 1
        return 1
def passes(op):
    if "32x32x16" in op or "32x32x8" in op: return 8
    return 4
def need(p, c):
    n = 0
    pd = set(p.dst); cs = set(c.src); cd = set(c.dst)
    pv = {r for r in pd if r[0] in "va"}; ps = {r for r in pd if r[0] == "s"}
    if p.valu:
        if pv & cs:
            if c.mfma: n = max(n, 2)
            if c.dpp and (pv & set(regs(c.ops[1]))): n = max(n, 2)
            if c.op.startswith("v_permlane"): n = max(n, 2)
            if c.op.startswith(("v_readlane", "v_readfirstlane")): n = max(n, 1)
            if p.trans and c.valu and not c.trans: n = max(n, 1)
            if p.trans and (c.ds or c.vmem): n = max(n, 1)
        if ps & cs:
            if c.valu or c.mfma: n = max(n, 2)
            if c.op.startswith(("v_readlane", "v_writelane")): n = max(n, 4)
            if c.vmem: n = max(n, 5)
            if c.salu: n = max(n, 1)
        if ps and c.op in ("v_cndmask_b32", "v_cndmask_b32_e32") and len(c.ops) == 4 and c.ops[3] == "vcc" and ("s", 106) in ps: n = max(n, 2)
        if ("s", 106) in ps and c.op.startswith("s_cbranch_vcc"): n = max(n, 1)
    if p.mfma:
        k = passes(p.op)
        if c.mfma:
            if pd & set(c.srcA + c.srcB): n = max(n, k + 4)
            if pd & set(c.srcC) and not (c.srcC == p.dst and passes(c.op) == k): n = max(n, k + 2)
            if pd & set(c.dst) and not (pd & set(c.srcC)): n = max(n, k + 2)
        else:
            if pd & (cs | cd): n = max(n, k + 4)
        if c.valu and (set(p.srcC) & cd): n = max(n, k - 1)
    if p.vmem and "store" in p.op and ("x4" in p.op or "x3" in p.op):
        if set(p.data) & cd: n = max(n, 2)
    if p.salu and ("s", 124) in pd: pass
    return n
class Asm:
    def __init__(s): s.L = []
    def __call__(s, text):
        for line in text.split("\n"):
            line = line.strip()
            if line: s.L.append(line)
    def finalize(s):
        out = []; hist = []
        nn = 0
        for text in s.L:
            c = Ins(text)
            if c.op.startswith((".", ";")) or not c.op:
                out.append(text); continue
            if c.label:
                out.append(text); continue
            dist = 0; req = 0
            for p in reversed(hist):
                r = need(p, c) - dist
                if r > req: req = r
                dist += p.states()
                if dist > 24: break
            if req > 0:
                k = req
                while k > 0:
                    m = min(k, 16); t = f"s_nop {m-1}"; out.append(t); hist.append(Ins(t)); k -= m; nn += 1
            out.append(text); hist.append(c)
            if len(hist) > 40: hist = hist[-40:]
        s.nops = nn
        return "\n".join(out) + "\n"
```

```python
import sys, struct
from asmlib import Asm
NAME = "recurrent_scan__sliding_block_cached__geglu_ffn__decode"
def f2u(x): return struct.unpack("<I", struct.pack("<f", x))[0]

Y1 = 0x1000
OP = 0x40000
ST = 0x80000
FP = 0x90000
WS_USED = 0x120000
TS_OFF = 0x10000000
XSTR = 1168
XN = 0
QL = 4736
PL = QL + 4096
HB = PL + 4096
MX = HB + 2048
LS = MX + 64
OR = LS + 64
RED = OR + 8192
LDS_SIZE = RED + 49152
assert OR % 16 == 0 and RED % 16 == 0 and QL % 16 == 0

def gen(diag=False, NKA=6, spin=20000, ntw="nt", ntkv="nt"):
    a = Asm()
    hdr = open("cdna_kernels/" + NAME + ".s.ref").read().split("\n") if False else []
    a(f"; @launch grid=(256,1,1) block=(512,1,1) lds={LDS_SIZE}")
    a('.amdgcn_target "amdgcn-amd-amdhsa--gfx950"')
    a(".text"); a(f".globl {NAME}_kernel"); a(".p2align 8"); a(f".type {NAME}_kernel,@function"); a(f"{NAME}_kernel:")
    ts = []
    def stamp(name):
        if not diag: return
        s = 70 + 2 * len(ts); assert s + 1 <= 101
        ts.append(name); a(f"s_memrealtime s[{s}:{s+1}]")
    if diag:
        for s in range(70, 102): a(f"s_mov_b32 s{s}, 0")
    stamp("start")
    K0, V0, W0, ACC = 64, 128, 192, 32
    a(f"""
    s_cmp_ge_u32 s2, 256
    s_cbranch_scc1 L_end
    s_load_dwordx2 s[4:5], s[0:1], 0
    s_load_dwordx2 s[8:9], s[0:1], 8
    s_load_dwordx2 s[24:25], s[0:1], 88
    s_mov_b32 s37, 8192
    s_mov_b32 s18, 4718592
    s_cmp_ge_u32 s2, 64
    s_cselect_b32 s36, 48, 24
    s_cselect_b32 s37, 9216, s37
    s_cselect_b32 s18, 5308416, s18
    s_cselect_b32 s38, 64, 0
    s_cmp_ge_u32 s2, 136
    s_cselect_b32 s36, 56, s36
    s_cselect_b32 s38, 136, s38
    s_load_dwordx2 s[16:17], s[0:1], s36
    v_lshrrev_b32 v20, 6, v0
    v_and_b32 v1, 63, v0
    s_mov_b32 s6, 4608
    v_readfirstlane_b32 s3, v20
    s_mov_b32 s7, 0x20000
    s_mov_b32 s10, 0x8000000
    s_mov_b32 s11, 0x20000
    s_mov_b32 s19, 0x20000
    s_mov_b32 s26, {0x20000000 if diag else WS_USED}
    s_mov_b32 s27, 0x20000
    """)
    a("""
    v_lshrrev_b32 v20, 4, v1
    v_bfe_u32 v21, v1, 3, 1
    v_lshl_add_u32 v21, v21, 2, v20
    v_and_b32 v22, 7, v1
    v_lshlrev_b32 v22, 4, v22
    v_mad_u32_u24 v5, v21, s37, v22
    s_lshl_b32 s40, s37, 3
    v_mad_u32_u24 v4, v21, s40, v22
    v_mul_u32_u24 v6, 4608, v21
    v_add_u32 v6, v6, v22
    v_lshlrev_b32 v3, 4, v1
    v_bfe_u32 v2, v1, 1, 3
    v_lshlrev_b32 v2, 8, v2
    v_lshl_add_u32 v2, v20, 5, v2
    v_and_b32 v22, 1, v1
    v_lshl_add_u32 v2, v22, 4, v2
    s_and_b32 s41, s3, 3
    s_mul_i32 s41, s41, 1152
    v_add_u32 v7, s41, v3
    v_mov_b32 v22, 0x100000
    v_cmp_gt_u32 vcc, 36, v1
    v_cndmask_b32 v7, v22, v7, vcc
    """)
    a("""
    s_sub_u32 s42, s2, s38
    s_lshl_b32 s42, s42, 7
    s_mul_i32 s44, s3, s40
    s_lshl_b32 s43, s37, 9
    s_add_u32 s43, s43, s44
    s_add_u32 s43, s43, s42
    s_lshl_b32 s44, s44, 3
    s_add_u32 s42, s42, s44
    """)
    a("""
    s_lshr_b32 s44, s2, 2
    s_lshl_b32 s44, s44, 21
    s_and_b32 s45, s2, 3
    s_lshl_b32 s45, s45, 17
    s_add_u32 s44, s44, s45
    s_lshl_b32 s45, s3, 14
    s_add_u32 s44, s44, s45
    s_add_u32 s44, s44, 0x180000
    s_add_u32 s45, s44, 4096
    s_add_u32 s46, s44, 8192
    s_add_u32 s47, s44, 12288
    s_cmp_ge_u32 s2, 208
    s_cselect_b32 s39, 32, 64
    s_waitcnt lgkmcnt(0)
    """)
    stamp("karg")
    def kload(G, ip):
        i = G * 2 + ip
        a(f"buffer_load_dwordx4 v[{K0+4*i}:{K0+4*i+3}], v2, s[8:11], s{44+(G>>1)} offen offset:{(G&1)*2048+ip*128} {ntkv}")
    def vload(t):
        a(f"buffer_load_dwordx4 v[{V0+4*t}:{V0+4*t+3}], v3, s[12:15], s{44+(t>>2)} offen offset:{(t&3)*1024} {ntkv}")
    def second_batch():
        a("""
        s_load_dwordx2 s[12:13], s[0:1], 16
        s_load_dwordx2 s[20:21], s[0:1], s39
        s_load_dwordx2 s[28:29], s[0:1], 72
        s_load_dwordx2 s[32:33], s[0:1], 80
        s_load_dword s48, s[24:25], 0
        """)
    a("s_setprio 3")
    a("s_cbranch_scc1 L_c_start")
    a(f"buffer_load_dwordx4 v[{V0}:{V0+3}], v7, s[4:7], 0 offen")
    a(f"buffer_load_dwordx4 v[{V0+4}:{V0+7}], v7, s[4:7], 0 offen offset:576")
    for j in range(8):
        a(f"buffer_load_dwordx4 v[{W0+4*j}:{W0+4*j+3}], v4, s[16:19], s42 offen {ntw}")
        if j < 7: a("s_add_u32 s42, s42, s37")
        if j == 1: second_batch()
    a(f"buffer_load_dwordx4 v[{W0+32}:{W0+35}], v5, s[16:19], s43 offen {ntw}")
    a("s_setprio 0")
    stamp("s1issued")
    X = V0; F = V0 + 8
    a("s_waitcnt vmcnt(9)")
    a("s_mov_b32 s50, 0xffff0000")
    for i in range(8):
        a(f"v_lshlrev_b32 v{F+2*i}, 16, v{X+i}")
        a(f"v_and_b32 v{F+2*i+1}, s50, v{X+i}")
    T = V0 + 24
    a(f"v_pk_add_f32 v[{T}:{T+1}], v[{F}:{F+1}], v[{F+2}:{F+3}]")
    for i in range(2, 8): a(f"v_pk_add_f32 v[{T}:{T+1}], v[{T}:{T+1}], v[{F+2*i}:{F+2*i+1}]")
    a(f"v_add_f32 v{T}, v{T}, v{T+1}")
    def wave_red(op, rs):
        for m in ("row_ror:8 row_mask:0xf", "row_ror:4 row_mask:0xf", "row_ror:2 row_mask:0xf", "row_ror:1 row_mask:0xf",
                  "row_bcast:15 row_mask:0xa", "row_bcast:31 row_mask:0xc"):
            for r in rs: a(f"{op}_dpp v{r}, v{r}, v{r} {m} bank_mask:0xf")
    wave_red("v_add_f32", [T])
    a(f"v_mul_f32 v{T}, {hex(f2u(1/576))}, v{T}")
    a(f"v_readlane_b32 s52, v{T}, 63")
    a("s_mov_b32 s53, s52")
    D = V0 + 26
    for i in range(8):
        a(f"v_pk_add_f32 v[{D}:{D+1}], v[{F+2*i}:{F+2*i+1}], s[52:53] neg_lo:[0,1] neg_hi:[0,1]")
        if i == 0: a(f"v_pk_mul_f32 v[{T}:{T+1}], v[{D}:{D+1}], v[{D}:{D+1}]")
        else: a(f"v_pk_fma_f32 v[{T}:{T+1}], v[{D}:{D+1}], v[{D}:{D+1}], v[{T}:{T+1}]")
    a(f"v_add_f32 v{T}, v{T}, v{T+1}")
    a(f"v_cndmask_b32 v{T}, 0, v{T}, vcc")
    wave_red("v_add_f32", [T])
    a(f"v_mul_f32 v{T}, {hex(f2u(1/576))}, v{T}")
    a(f"v_readlane_b32 s54, v{T}, 63")
    a(f"v_mov_b32 v{T}, s52")
    a(f"v_mov_b32 v{T+1}, s54")
    a(f"v_cvt_pk_bf16_f32 v{T}, v{T}, v{T+1}")
    a(f"v_and_b32 v{T+1}, s50, v{T}")
    a(f"v_lshlrev_b32 v{D}, 16, v{T}")
    a(f"v_mov_b32 v{D+1}, v{D}")
    a(f"v_add_f32 v{T+1}, {hex(f2u(1e-5))}, v{T+1}")
    a(f"v_cvt_pk_bf16_f32 v{T+1}, v{T+1}, v{T+1}")
    a(f"v_and_b32 v{T+1}, s50, v{T+1}")
    a(f"v_sqrt_f32 v{T+1}, v{T+1}")
    a(f"v_cvt_pk_bf16_f32 v{T+1}, v{T+1}, v{T+1}")
    a(f"v_and_b32 v{T+1}, s50, v{T+1}")
    a(f"v_rcp_f32 v{T}, v{T+1}")
    a(f"v_mov_b32 v{T+1}, v{T}")
    for i in range(8):
        a(f"v_pk_add_f32 v[{F+2*i}:{F+2*i+1}], v[{F+2*i}:{F+2*i+1}], v[{D}:{D+1}] neg_lo:[0,1] neg_hi:[0,1]")
    for i in range(8): a(f"v_cvt_pk_bf16_f32 v{X+i}, v{F+2*i}, v{F+2*i+1}")
    for i in range(8):
        a(f"v_lshlrev_b32 v{F+2*i}, 16, v{X+i}")
        a(f"v_and_b32 v{F+2*i+1}, s50, v{X+i}")
    for i in range(8): a(f"v_pk_mul_f32 v[{F+2*i}:{F+2*i+1}], v[{F+2*i}:{F+2*i+1}], v[{T}:{T+1}]")
    for i in range(8): a(f"v_cvt_pk_bf16_f32 v{X+i}, v{F+2*i}, v{F+2*i+1}")
    a(f"""
    s_and_b32 s41, s3, 3
    s_mul_i32 s41, s41, {XSTR}
    v_add_u32 v20, s41, v3
    s_mov_b32 exec_hi, 0xf
    ds_write_b128 v20, v[{X}:{X+3}] offset:{XN}
    ds_write_b128 v20, v[{X+4}:{X+7}] offset:{XN+576}
    s_mov_b64 exec, -1
    s_setprio 2
    """)
    stamp("ln")
    for i in range(NKA): kload(i >> 1, i & 1)
    a("s_setprio 0")
    a(f"""
    v_and_b32 v20, 3, v1
    v_mul_u32_u24 v20, {XSTR}, v20
    v_bfe_u32 v21, v1, 2, 1
    v_lshrrev_b32 v22, 4, v1
    v_lshl_add_u32 v21, v21, 2, v22
    s_lshl_b32 s41, s3, 7
    v_lshl_add_u32 v22, v21, 4, v20
    v_add_u32 v22, s41, v22
    s_lshl_b32 s41, s3, 4
    v_lshl_add_u32 v23, v21, 1, v20
    v_add_u32 v23, s41, v23
    s_waitcnt lgkmcnt(0)
    s_barrier
    ds_read_b128 v[24:27], v22 offset:{XN}
    ds_read_u16 v28, v23 offset:{XN+1024}
    """)
    common_setup_done = False
    def common_setup():
        a(f"""
        s_add_u32 s48, s48, 0x01010101
        s_mov_b32 s50, 0xffff0000
        s_mov_b32 s51, 0xffffff00
        s_mov_b32 s55, 0x05040100
        s_mov_b32 s56, 0x07060302
        s_mov_b32 s57, 0x0c0c0400
        s_mov_b32 s58, 0x04000c0c
        s_mov_b32 s14, 0x8000000
        s_mov_b32 s15, 0x20000
        s_mov_b32 s23, 0x20000
        s_mov_b32 s30, 4608
        s_mov_b32 s31, 0x20000
        s_mov_b32 s34, 256
        s_mov_b32 s35, 0x20000
        s_and_b32 s41, s48, 0xff
        v_mov_b32 v8, s41
        s_bfe_u32 s41, s48, 0x80008
        v_mov_b32 v9, s41
        s_bfe_u32 s41, s48, 0x80010
        v_mov_b32 v10, s41
        s_lshr_b32 s41, s48, 24
        v_mov_b32 v11, s41
        """)
        a(f"""
        v_lshrrev_b32 v18, 5, v1
        v_lshlrev_b32 v18, 10, v18
        v_bfe_u32 v19, v1, 4, 1
        v_lshl_add_u32 v18, v19, 6, v18
        v_and_b32 v19, 3, v1
        v_lshl_add_u32 v18, v19, 4, v18
        s_lshl_b32 s41, s3, 11
        s_add_u32 s41, s41, {RED}
        v_add_u32 v18, s41, v18
        """)
        a(f"""
        s_cmp_lg_u32 s3, 7
        s_cbranch_scc1 L_nocnt{common_setup.n}
        v_mov_b32 v19, 1
        v_mov_b32 v29, 0
        s_mov_b64 exec, 1
        buffer_atomic_add v19, v29, s[32:35], 0 offen sc1
        s_mov_b64 exec, -1
        L_nocnt{common_setup.n}:
        """)
        common_setup.n += 1
    common_setup.n = 0
    common_setup()
    B2 = V0 + 8
    a(f"""
    s_waitcnt lgkmcnt(0)
    v_mov_b32 v{B2}, v28
    v_mov_b32 v{B2+1}, 0
    v_lshlrev_b32 v{B2+2}, 16, v28
    v_mov_b32 v{B2+3}, 0
    v_mov_b32 v{B2+4}, 0
    v_mov_b32 v{B2+5}, v28
    v_mov_b32 v{B2+6}, 0
    v_lshlrev_b32 v{B2+7}, 16, v28
    s_waitcnt vmcnt({NKA})
    """)
    stamp("s1data")
    TQ = V0 + 16
    for e in range(8):
        i = e >> 1; sel = 55 + (e & 1); t = TQ + 4 * e
        for jj in range(4):
            a(f"v_perm_b32 v{t+jj}, v{W0+4*(2*jj+1)+i}, v{W0+4*(2*jj)+i}, s{sel}")
        if e >= 1:
            tp = TQ + 4 * (e - 1)
            a(f"v_mfma_f32_16x16x32_bf16 v[{ACC+4*(e-1)}:{ACC+4*(e-1)+3}], v[{tp}:{tp+3}], v[24:27], 0")
    tp = TQ + 28
    a(f"v_mfma_f32_16x16x32_bf16 v[{ACC+28}:{ACC+31}], v[{tp}:{tp+3}], v[24:27], 0")
    for e in range(8):
        p = W0 + 32 + 2 * (e >> 2); bb = B2 + 2 * (e & 3)
        a(f"v_mfma_f32_16x16x16_bf16 v[{ACC+4*e}:{ACC+4*e+3}], v[{p}:{p+1}], v[{bb}:{bb+1}], v[{ACC+4*e}:{ACC+4*e+3}]")
    VALID = "0x00f000f0000f000f"
    def red_write(acc, blk):
        for e in range(8): a(f"ds_write_b128 v18, v[{acc+4*e}:{acc+4*e+3}] offset:{blk*16384+e*128}")
    a(f"s_mov_b32 exec_lo, 0x000f000f"); a("s_mov_b32 exec_hi, 0x00f000f0")
    red_write(ACC, 0)
    a("s_mov_b64 exec, -1")
    a("s_waitcnt lgkmcnt(0)"); a("s_barrier")
    def red_sum(vaddr, R):
        for p in range(16): a(f"ds_read_b128 v[{R+4*p}:{R+4*p+3}], v{vaddr} offset:{RED+p*1024}")
        n = 16
        a("s_waitcnt lgkmcnt(8)")
        for p in range(1, 8):
            a(f"v_pk_add_f32 v[{R}:{R+1}], v[{R}:{R+1}], v[{R+4*p}:{R+4*p+1}]")
            a(f"v_pk_add_f32 v[{R+2}:{R+3}], v[{R+2}:{R+3}], v[{R+4*p+2}:{R+4*p+3}]")
        a("s_waitcnt lgkmcnt(0)")
        for p in range(8, 16):
            a(f"v_pk_add_f32 v[{R}:{R+1}], v[{R}:{R+1}], v[{R+4*p}:{R+4*p+1}]")
            a(f"v_pk_add_f32 v[{R+2}:{R+3}], v[{R+2}:{R+3}], v[{R+4*p+2}:{R+4*p+3}]")
    def tag(R):
        for i in range(4): a(f"v_and_or_b32 v{R+i}, v{R+i}, s51, v{8+i}")
    def check(R, t0, acc=None):
        a(f"v_perm_b32 v{t0}, v{R+1}, v{R}, s57")
        a(f"v_perm_b32 v{t0+1}, v{R+3}, v{R+2}, s58")
        a(f"v_or_b32 v{t0}, v{t0}, v{t0+1}")
        if acc is None: a(f"v_cmp_ne_u32 vcc, s48, v{t0}")
        else:
            a(f"v_cmp_ne_u32 s[{acc}:{acc+1}], s48, v{t0}")
            a(f"s_or_b64 vcc, vcc, s[{acc}:{acc+1}]")
    a("s_cmp_lg_u32 s3, 0"); a("s_cbranch_scc1 L_s1done")
    a("s_setprio 3")
    R = V0
    red_sum(3, R)
    a(f"""
    v_cvt_pk_bf16_f32 v{R+4}, v{R}, v{R+1}
    v_cvt_pk_bf16_f32 v{R+5}, v{R+2}, v{R+3}
    v_lshl_or_b32 v{R}, v{R+4}, 16, v8
    v_and_or_b32 v{R+1}, v{R+4}, s50, v9
    v_lshl_or_b32 v{R+2}, v{R+5}, 16, v10
    v_and_or_b32 v{R+3}, v{R+5}, s50, v11
    v_and_b32 v20, 3, v1
    v_lshlrev_b32 v20, 8, v20
    v_bfe_u32 v21, v1, 2, 1
    v_lshl_add_u32 v20, v21, 7, v20
    v_lshrrev_b32 v21, 3, v1
    v_lshl_add_u32 v20, v21, 4, v20
    s_lshl_b32 s41, s2, 10
    s_add_u32 s41, s41, {Y1}
    buffer_store_dwordx4 v[{R}:{R+3}], v20, s[24:27], s41 offen sc1
    """)
    stamp("s1pub")
    a("L_s1done:")
    a("s_setprio 2")
    a("s_branch L_kb")
    a("L_c_start:")
    a("s_setprio 2")
    kload(0, 0); kload(0, 1)
    second_batch()
    for i in range(2, NKA): kload(i >> 1, i & 1)
    a("s_waitcnt lgkmcnt(0)")
    common_setup()
    a("L_kb:")
    for i in range(NKA, 16): kload(i >> 1, i & 1)
    a("s_setprio 1")
    for t in range(8): vload(t)
    a(f"""
    s_cmp_ge_u32 s2, 208
    s_cbranch_scc1 L_dec_c
    s_sub_u32 s41, s2, 46
    s_mul_i32 s62, s41, 57
    s_lshr_b32 s62, s62, 9
    s_mul_i32 s60, s62, 9
    s_sub_u32 s60, s41, s60
    s_add_u32 s59, s62, 16
    s_cmp_ge_u32 s2, 46
    s_cselect_b32 s22, 5308416, 0
    s_cselect_b32 s62, s62, 0
    s_branch L_dec_j
    L_dec_c:
    s_sub_u32 s41, s2, 208
    s_mul_i32 s62, s41, 43
    s_lshr_b32 s62, s62, 7
    s_mul_i32 s60, s62, 3
    s_sub_u32 s60, s41, s60
    s_mul_i32 s60, s60, 3
    s_mov_b32 s59, s62
    s_mov_b32 s22, 4718592
    L_dec_j:
    s_lshl_b32 s61, s62, 3
    s_add_u32 s61, s61, s3
    s_mul_i32 s61, s61, {32*1152}
    s_lshl_b32 s41, s60, 7
    s_add_u32 s61, s61, s41
    """)
    a(f"""
    v_lshrrev_b32 v16, 4, v1
    v_lshlrev_b32 v16, 10, v16
    v_and_b32 v20, 15, v1
    v_lshl_add_u32 v16, v20, 4, v16
    s_bfe_u32 s41, s2, 0x40002
    s_lshl_b32 s41, s41, 12
    s_lshr_b32 s63, s2, 6
    s_lshl_b32 s63, s63, 8
    s_add_u32 s63, s63, s41
    s_add_u32 s63, s63, {Y1}
    v_lshrrev_b32 v17, 5, v1
    v_mul_u32_u24 v17, {72*1024}, v17
    v_bfe_u32 v20, v1, 3, 2
    v_lshl_add_u32 v17, v20, 8, v17
    v_and_b32 v20, 7, v1
    v_lshl_add_u32 v17, v20, 4, v17
    s_lshl_b32 s64, s62, 12
    s_lshl_b32 s41, s3, 9
    s_and_b32 s41, s41, 0xc00
    s_add_u32 s64, s64, s41
    s_and_b32 s41, s3, 1
    s_lshl_b32 s41, s41, 7
    s_add_u32 s64, s64, s41
    s_add_u32 s64, s64, {Y1 + 64*1024}
    buffer_load_dwordx4 v[244:247], v16, s[24:27], s63 offen sc1
    buffer_load_dwordx4 v[248:251], v17, s[24:27], s64 offen sc1
    """)
    for t in range(8, 16): vload(t)
    a("s_setprio 0")
    stamp("vissued")
    a(f"""
    v_lshrrev_b32 v20, 3, v1
    v_lshlrev_b32 v20, 6, v20
    v_and_b32 v21, 7, v1
    v_lshl_add_u32 v20, v21, 1, v20
    s_lshl_b32 s41, s3, 9
    v_add_u32 v20, s41, v20
    v_and_b32 v21, 1, v1
    v_lshlrev_b32 v21, 8, v21
    v_lshrrev_b32 v22, 4, v1
    v_lshl_add_u32 v21, v22, 5, v21
    v_bfe_u32 v22, v1, 1, 1
    v_lshl_add_u32 v21, v22, 4, v21
    v_add_u32 v21, s41, v21
    s_mov_b32 s65, {spin}
    s_waitcnt vmcnt(8)
    L_qchk:
    """)
    check(244, 22)
    a(f"""
    s_cbranch_vccz L_qok
    s_sub_u32 s65, s65, 1
    s_cbranch_scc1 L_qok
    buffer_load_dwordx4 v[244:247], v16, s[24:27], s63 offen sc1
    s_waitcnt vmcnt(0)
    s_branch L_qchk
    L_qok:
    """)
    stamp("qok")
    for r in range(4): a(f"ds_write_b16_d16_hi v20, v{244+r} offset:{QL+16*r}")
    a(f"ds_read_b128 v[24:27], v21 offset:{QL}")
    a(f"ds_read_b128 v[28:31], v21 offset:{QL+128}")
    a(f"""
    s_sub_u32 s41, s2, 46
    s_cmp_ge_u32 s41, 162
    s_cbranch_scc1 L_noh
    L_guchk:
    """)
    check(248, 22)
    a(f"""
    s_cbranch_vccz L_guok
    s_sub_u32 s65, s65, 1
    s_cbranch_scc1 L_guok
    buffer_load_dwordx4 v[248:251], v17, s[24:27], s64 offen sc1
    s_waitcnt vmcnt(0)
    s_branch L_guchk
    L_guok:
    v_permlane32_swap_b32 v248, v250
    v_permlane32_swap_b32 v249, v251
    s_mov_b32 s41, {hex(f2u(2*0.7978845608028654*1.4426950408889634*0.044715))}
    v_mov_b32 v252, {hex(f2u(2*0.7978845608028654*1.4426950408889634))}
    """)
    for r in range(4): a(f"v_and_b32 v{248+r}, s50, v{248+r}")
    for r in range(2): a(f"v_mul_f32 v{244+r}, v{248+r}, v{248+r}")
    for r in range(2): a(f"v_fma_f32 v{244+r}, v{244+r}, s41, v252")
    for r in range(2): a(f"v_mul_f32 v{244+r}, v{244+r}, v{248+r}")
    for r in range(2): a(f"v_exp_f32 v{244+r}, -v{244+r}")
    for r in range(2): a(f"v_add_f32 v{244+r}, 1.0, v{244+r}")
    for r in range(2): a(f"v_rcp_f32 v{244+r}, v{244+r}")
    for r in range(2): a(f"v_mul_f32 v{244+r}, v{244+r}, v{248+r}")
    a(f"""
    v_cvt_pk_bf16_f32 v244, v244, v245
    v_and_b32 v245, s50, v244
    v_lshlrev_b32 v244, 16, v244
    v_mul_f32 v244, v244, v250
    v_mul_f32 v245, v245, v251
    v_cvt_pk_bf16_f32 v244, v244, v245
    v_bfe_u32 v22, v1, 3, 2
    v_lshlrev_b32 v22, 6, v22
    v_lshrrev_b32 v23, 5, v1
    v_lshl_add_u32 v22, v23, 5, v22
    v_and_b32 v23, 7, v1
    v_lshl_add_u32 v22, v23, 1, v22
    s_lshl_b32 s41, s3, 8
    v_add_u32 v22, s41, v22
    ds_write_b16 v22, v244 offset:{HB}
    ds_write_b16_d16_hi v22, v244 offset:{HB+16}
    L_noh:
    s_mov_b32 s66, 0x000f000f
    s_mov_b32 s67, 0x000f000f
    s_waitcnt lgkmcnt(0)
    """)
    for t in range(4):
        for ip in range(2):
            for r in range(4):
                a(f"v_cndmask_b32 v{ACC+(t*2+ip)*4+r}, 0, v{24+4*ip+r}, s[66:67]")
        if t < 3: a("s_lshl_b64 s[66:67], s[66:67], 4")
    for G4 in range(4):
        for ip in range(2):
            for par in range(2):
                G = par * 4 + G4; i = G * 2 + ip
                A = ACC + (G4 * 2 + ip) * 4; Dd = 20 + 4 * par
                C = "0" if (G4 == 0 and ip == 0) else f"v[{Dd}:{Dd+3}]"
                a(f"v_mfma_f32_16x16x32_bf16 v[{Dd}:{Dd+3}], v[{A}:{A+3}], v[{K0+4*i}:{K0+4*i+3}], {C}")
    a(f"""
    s_mov_b32 s66, 0xaaaaaaaa
    s_mov_b32 s67, 0xaaaaaaaa
    s_mov_b32 s41, {hex(f2u(128 ** -0.5))}
    v_add_f32_dpp v20, v22, v20 quad_perm:[1,0,3,2] row_mask:0xf bank_mask:0xf
    v_add_f32_dpp v21, v23, v21 quad_perm:[1,0,3,2] row_mask:0xf bank_mask:0xf
    v_add_f32_dpp v26, v24, v26 quad_perm:[1,0,3,2] row_mask:0xf bank_mask:0xf
    v_add_f32_dpp v27, v25, v27 quad_perm:[1,0,3,2] row_mask:0xf bank_mask:0xf
    v_cndmask_b32 v20, v20, v26, s[66:67]
    v_cndmask_b32 v21, v21, v27, s[66:67]
    v_cvt_pk_bf16_f32 v22, v20, v21
    v_lshlrev_b32 v20, 16, v22
    v_and_b32 v21, s50, v22
    v_mul_f32 v20, s41, v20
    v_mul_f32 v21, s41, v21
    v_cvt_pk_bf16_f32 v22, v20, v21
    s_mov_b32 s41, {hex(f2u(1.4426950408889634))}
    v_lshlrev_b32 v20, 16, v22
    v_and_b32 v21, s50, v22
    v_mul_f32 v20, s41, v20
    v_mul_f32 v21, s41, v21
    v_mov_b32 v22, v20
    v_mov_b32 v23, v21
    """)
    wave_red("v_max_f32", [22, 23])
    a(f"""
    s_lshl_b32 s41, s3, 3
    v_mov_b32 v24, s41
    s_mov_b32 exec_lo, 0
    s_mov_b32 exec_hi, 0x80000000
    ds_write_b64 v24, v[22:23] offset:{MX}
    s_mov_b64 exec, -1
    v_mov_b32 v24, 0
    s_waitcnt lgkmcnt(0)
    s_barrier
    ds_read_b128 v[32:35], v24 offset:{MX}
    ds_read_b128 v[36:39], v24 offset:{MX+16}
    ds_read_b128 v[40:43], v24 offset:{MX+32}
    ds_read_b128 v[44:47], v24 offset:{MX+48}
    """)
    stamp("qk")
    def s3load(blk):
        base = (W0 + 36) if blk == 0 else (W0 + 16 * (blk - 1))
        for j in range(4):
            a(f"buffer_load_dwordx4 v[{base+4*j}:{base+4*j+3}], v6, s[20:23], s61 offen offset:{j*1152+blk*128} {ntw}")
        return base
    s3load(0)
    a(f"""
    v_bfe_u32 v25, v1, 1, 2
    v_lshlrev_b32 v25, 6, v25
    v_and_b32 v26, 1, v1
    v_lshl_add_u32 v25, v26, 5, v25
    v_lshrrev_b32 v26, 4, v1
    v_lshl_add_u32 v25, v26, 3, v25
    v_bfe_u32 v27, v1, 3, 1
    v_lshl_add_u32 v25, v27, 2, v25
    s_lshl_b32 s41, s3, 9
    v_add_u32 v25, s41, v25
    v_lshl_add_u32 v26, v27, 2, v26
    v_lshlrev_b32 v26, 6, v26
    v_add_u32 v26, s41, v26
    v_and_b32 v27, 1, v1
    v_lshlrev_b32 v27, 4, v27
    v_mov_b32 v28, 0xffff
    v_lshlrev_b32 v27, v27, v28
    v_bfe_u32 v28, v1, 1, 2
    """)
    for i in range(4):
        a(f"v_cmp_eq_u32 vcc, {i}, v28")
        a(f"v_cndmask_b32 v{12+i}, 0, v27, vcc")
    a(f"""
    s_waitcnt lgkmcnt(0)
    v_max3_f32 v22, v32, v34, v36
    v_max3_f32 v23, v33, v35, v37
    v_max3_f32 v22, v22, v38, v40
    v_max3_f32 v23, v23, v39, v41
    v_max3_f32 v22, v22, v42, v44
    v_max3_f32 v23, v23, v43, v45
    v_max_f32 v22, v22, v46
    v_max_f32 v23, v23, v47
    v_and_b32 v30, s51, v22
    v_and_b32 v31, s51, v23
    v_sub_f32 v20, v20, v30
    v_sub_f32 v21, v21, v31
    v_exp_f32 v20, v20
    v_exp_f32 v21, v21
    v_cvt_pk_bf16_f32 v22, v20, v20
    v_cvt_pk_bf16_f32 v23, v21, v21
    ds_write_b32 v25, v22 offset:{PL}
    ds_write_b32 v25, v23 offset:{PL+256}
    ds_read_b128 v[32:35], v26 offset:{PL}
    ds_read_b128 v[36:39], v26 offset:{PL+16}
    ds_read_b128 v[40:43], v26 offset:{PL+32}
    ds_read_b128 v[44:47], v26 offset:{PL+48}
    """)
    wave_red("v_add_f32", [20, 21])
    a(f"""
    s_lshl_b32 s41, s3, 2
    v_mov_b32 v24, s41
    s_mov_b32 exec_lo, 0
    s_mov_b32 exec_hi, 0x80000000
    ds_write_b32 v24, v20 offset:{LS}
    ds_write_b32 v24, v21 offset:{LS+32}
    s_mov_b64 exec, -1
    s_waitcnt lgkmcnt(0)
    """)
    def bbuild(t):
        b = 48 + 4 * (t % 3)
        for i in range(4): a(f"v_and_b32 v{b+i}, v{12+i}, v{32+t}")
    bbuild(0)
    for t in range(16):
        if t + 1 < 16: bbuild(t + 1)
        if t >= 8: a(f"s_waitcnt vmcnt({15-t+4})")
        b = 48 + 4 * (t % 3)
        C = "0" if t == 0 else "v[60:63]"
        a(f"v_mfma_f32_16x16x32_bf16 v[60:63], v[{V0+4*t}:{V0+4*t+3}], v[{b}:{b+3}], {C}")
    stamp("pv")
    a("s_cmp_lt_u32 s2, 208"); a("s_cbranch_scc1 L_nos3bc")
    s3load(1); s3load(2)
    a("L_nos3bc:")
    a(f"""
    s_lshl_b32 s41, s3, 10
    v_add_u32 v24, s41, v3
    s_nop 4
    ds_write_b128 v24, v[60:63] offset:{OR}
    s_waitcnt lgkmcnt(0)
    s_barrier
    s_lshr_b32 s66, s2, 6
    s_bfe_u32 s67, s2, 0x40002
    s_lshl_b32 s67, s67, 2
    s_add_u32 s66, s66, s67
    s_and_b32 s67, s2, 3
    s_cmp_lg_u32 s3, 6
    s_cbranch_scc1 L_noopub
    s_setprio 3
    """)
    R = V0
    for p in range(8): a(f"ds_read_b128 v[{R+4*p}:{R+4*p+3}], v3 offset:{OR+p*1024}")
    a(f"""
    v_bfe_u32 v24, v1, 3, 1
    v_lshlrev_b32 v24, 11, v24
    v_lshrrev_b32 v25, 4, v1
    v_lshl_add_u32 v24, v25, 7, v24
    v_and_b32 v25, 7, v1
    v_lshl_add_u32 v24, v25, 4, v24
    s_lshl_b32 s41, s66, 12
    s_lshl_b32 s68, s67, 9
    s_add_u32 s41, s41, s68
    s_add_u32 s41, s41, {OP}
    s_waitcnt lgkmcnt(4)
    """)
    for p in range(1, 8):
        if p == 4: a("s_waitcnt lgkmcnt(0)")
        a(f"v_pk_add_f32 v[{R}:{R+1}], v[{R}:{R+1}], v[{R+4*p}:{R+4*p+1}]")
        a(f"v_pk_add_f32 v[{R+2}:{R+3}], v[{R+2}:{R+3}], v[{R+4*p+2}:{R+4*p+3}]")
    tag(R)
    a(f"buffer_store_dwordx4 v[{R}:{R+3}], v24, s[24:27], s41 offen sc1")
    stamp("opub")
    a(f"""
    s_setprio 0
    s_waitcnt vmcnt(1)
    s_branch L_s3go
    L_noopub:
    s_cmp_lg_u32 s3, 7
    s_cbranch_scc1 L_nospub
    s_setprio 3
    v_and_b32 v24, 1, v1
    v_lshlrev_b32 v25, 5, v24
    ds_read_b128 v[{R}:{R+3}], v25 offset:{LS}
    ds_read_b128 v[{R+4}:{R+7}], v25 offset:{LS+16}
    v_cmp_eq_u32 vcc, 1, v24
    v_cndmask_b32 v{R+8}, v30, v31, vcc
    v_lshlrev_b32 v24, 4, v24
    s_lshl_b32 s41, s66, 7
    s_lshl_b32 s68, s67, 5
    s_add_u32 s41, s41, s68
    s_add_u32 s41, s41, {ST}
    s_waitcnt lgkmcnt(0)
    v_pk_add_f32 v[{R}:{R+1}], v[{R}:{R+1}], v[{R+2}:{R+3}]
    v_pk_add_f32 v[{R+4}:{R+5}], v[{R+4}:{R+5}], v[{R+6}:{R+7}]
    v_pk_add_f32 v[{R}:{R+1}], v[{R}:{R+1}], v[{R+4}:{R+5}]
    v_add_f32 v{R+9}, v{R}, v{R+1}
    v_mov_b32 v{R+10}, v{R+8}
    v_mov_b32 v{R+11}, v{R+9}
    """)
    tag(R + 8)
    a(f"""
    s_mov_b64 exec, 3
    buffer_store_dwordx4 v[{R+8}:{R+11}], v24, s[24:27], s41 offen sc1
    s_mov_b64 exec, -1
    s_setprio 0
    s_waitcnt vmcnt(1)
    s_branch L_s3go
    L_nospub:
    s_waitcnt vmcnt(0)
    L_s3go:
    s_cmp_lt_u32 s2, 46
    s_cbranch_scc1 L_final
    """)
    stamp("s3data")
    a(f"""
    v_and_b32 v19, 3, v1
    v_lshlrev_b32 v19, 6, v19
    v_bfe_u32 v20, v1, 2, 1
    v_lshl_add_u32 v19, v20, 5, v19
    v_lshrrev_b32 v20, 4, v1
    v_lshl_add_u32 v19, v20, 3, v19
    s_lshl_b32 s41, s3, 8
    v_add_u32 v19, s41, v19
    """)
    def transp(src, dst):
        for e in range(8):
            i = e >> 1; sel = 55 + (e & 1)
            for jj in range(2):
                a(f"v_perm_b32 v{dst+2*e+jj}, v{src+4*(2*jj+1)+i}, v{src+4*(2*jj)+i}, s{sel}")
    transp(W0 + 36, K0)
    a("s_cmp_lt_u32 s2, 208"); a("s_cbranch_scc1 L_mm")
    transp(W0, K0 + 16); transp(W0 + 16, K0 + 32)
    a(f"""
    v_and_b32 v20, 3, v1
    v_lshlrev_b32 v21, 9, v20
    v_bfe_u32 v22, v1, 2, 3
    v_lshl_add_u32 v21, v22, 4, v21
    v_lshrrev_b32 v23, 5, v1
    v_lshl_add_u32 v21, v23, 12, v21
    v_lshlrev_b32 v20, 5, v20
    v_lshl_add_u32 v20, v23, 7, v20
    s_lshl_b32 s66, s62, 14
    s_lshr_b32 s41, s3, 2
    s_lshl_b32 s67, s41, 11
    s_add_u32 s66, s66, s67
    s_and_b32 s67, s3, 3
    s_lshl_b32 s67, s67, 7
    s_add_u32 s66, s66, s67
    s_add_u32 s66, s66, {OP}
    s_add_u32 s68, s66, 8192
    s_lshl_b32 s67, s62, 9
    s_lshl_b32 s41, s41, 4
    s_add_u32 s67, s67, s41
    s_add_u32 s67, s67, {ST}
    v_lshlrev_b32 v22, 1, v22
    v_lshl_add_u32 v22, v23, 6, v22
    s_lshl_b32 s41, s3, 8
    v_add_u32 v22, s41, v22
    s_mov_b32 s65, {spin}
    L_ochk:
    buffer_load_dwordx4 v[32:35], v21, s[24:27], s66 offen sc1
    buffer_load_dwordx4 v[36:39], v21, s[24:27], s68 offen sc1
    buffer_load_dwordx4 v[40:43], v20, s[24:27], s67 offen sc1
    buffer_load_dwordx4 v[44:47], v20, s[24:27], s67 offen offset:256 sc1
    s_waitcnt vmcnt(0)
    """)
    check(32, 24); check(36, 26, 52); check(40, 24, 52); check(44, 26, 52)
    a(f"""
    s_cbranch_vccz L_ook
    s_sub_u32 s65, s65, 1
    s_cbranch_scc0 L_ochk
    L_ook:
    """)
    stamp("ook")
    a("v_and_b32 v40, s51, v40"); a("v_and_b32 v44, s51, v44")
    for q in ("[1,0,3,2]", "[2,3,0,1]"):
        src = (40, 44) if q == "[1,0,3,2]" else (42, 46)
        a(f"v_max_f32_dpp v42, v{src[0]}, v{src[0]} quad_perm:{q} row_mask:0xf bank_mask:0xf")
        a(f"v_max_f32_dpp v46, v{src[1]}, v{src[1]} quad_perm:{q} row_mask:0xf bank_mask:0xf")
    a("""
    v_sub_f32 v40, v40, v42
    v_sub_f32 v44, v44, v46
    v_exp_f32 v40, v40
    v_exp_f32 v44, v44
    v_mul_f32 v41, v41, v40
    v_mul_f32 v45, v45, v44
    v_add_f32_dpp v41, v41, v41 quad_perm:[1,0,3,2] row_mask:0xf bank_mask:0xf
    v_add_f32_dpp v45, v45, v45 quad_perm:[1,0,3,2] row_mask:0xf bank_mask:0xf
    v_add_f32_dpp v41, v41, v41 quad_perm:[2,3,0,1] row_mask:0xf bank_mask:0xf
    v_add_f32_dpp v45, v45, v45 quad_perm:[2,3,0,1] row_mask:0xf bank_mask:0xf
    v_rcp_f32 v41, v41
    v_rcp_f32 v45, v45
    v_mul_f32 v40, v40, v41
    v_mul_f32 v44, v44, v45
    """)
    for r in range(4): a(f"v_mul_f32 v{32+r}, v{32+r}, v40")
    for r in range(4): a(f"v_mul_f32 v{36+r}, v{36+r}, v44")
    for q in ("[1,0,3,2]", "[2,3,0,1]"):
        for r in range(8): a(f"v_add_f32_dpp v{32+r}, v{32+r}, v{32+r} quad_perm:{q} row_mask:0xf bank_mask:0xf")
    for i in range(2):
        for rp in range(2):
            a(f"v_cvt_pk_bf16_f32 v{40+2*i+rp}, v{32+4*i+2*rp}, v{32+4*i+2*rp+1}")
    for i in range(2):
        for rp in range(2):
            a(f"ds_write_b16 v22, v{40+2*i+rp} offset:{HB+i*128+rp*32}")
            a(f"ds_write_b16_d16_hi v22, v{40+2*i+rp} offset:{HB+i*128+rp*32+16}")
    a("L_mm:")
    a(f"ds_read_b64 v[20:21], v19 offset:{HB}")
    a("s_waitcnt lgkmcnt(0)")
    accs = [V0, V0 + 32, ACC]
    def mm(blk):
        for e in range(8):
            t = K0 + 16 * blk + 2 * e; d = accs[blk] + 4 * e
            a(f"v_mfma_f32_16x16x16_bf16 v[{d}:{d+3}], v[{t}:{t+1}], v[20:21], 0")
    mm(0)
    a("s_cmp_lt_u32 s2, 208"); a("s_cbranch_scc1 L_mm1")
    mm(1); mm(2)
    a(f"s_mov_b32 exec_lo, 0x000f000f"); a("s_mov_b32 exec_hi, 0x00f000f0")
    red_write(accs[1], 1); red_write(accs[2], 2)
    a("L_mm1:")
    a(f"s_mov_b32 exec_lo, 0x000f000f"); a("s_mov_b32 exec_hi, 0x00f000f0")
    a("s_nop 7")
    red_write(accs[0], 0)
    a("s_mov_b64 exec, -1")
    a(f"""
    v_and_b32 v20, 3, v1
    v_mul_u32_u24 v20, {36*4096}, v20
    v_bfe_u32 v21, v1, 2, 1
    v_lshl_add_u32 v20, v21, 13, v20
    v_lshrrev_b32 v21, 5, v1
    v_lshl_add_u32 v20, v21, 12, v20
    v_bfe_u32 v21, v1, 3, 2
    v_lshl_add_u32 v20, v21, 4, v20
    s_add_u32 s41, s60, s3
    s_lshl_b32 s41, s41, 14
    s_lshl_b32 s66, s59, 6
    s_add_u32 s41, s41, s66
    s_add_u32 s41, s41, {FP}
    s_lshl_b32 s66, s3, 14
    v_add_u32 v21, s66, v3
    s_cmp_ge_u32 s2, 208
    s_cselect_b32 s66, 3, 1
    s_waitcnt lgkmcnt(0)
    s_barrier
    s_cmp_ge_u32 s3, s66
    s_cbranch_scc1 L_fin
    """)
    R = K0
    red_sum(21, R)
    tag(R)
    a(f"buffer_store_dwordx4 v[{R}:{R+3}], v20, s[24:27], s41 offen sc1")
    stamp("s3pub")
    a("s_branch L_fin")
    a(f"""
    L_final:
    s_cmp_ge_u32 s2, 36
    s_cbranch_scc1 L_epoch
    s_cmp_ge_u32 s3, 4
    s_cbranch_scc1 L_fin
    s_mul_i32 s66, s2, 57
    s_lshr_b32 s66, s66, 9
    s_mul_i32 s67, s66, 9
    s_sub_u32 s67, s2, s67
    s_mul_i32 s66, s66, 1152
    s_lshl_b32 s67, s67, 7
    s_add_u32 s66, s66, s67
    s_lshr_b32 s67, s3, 1
    s_lshl_b32 s67, s67, 6
    s_add_u32 s66, s66, s67
    s_and_b32 s67, s3, 1
    s_lshl_b32 s67, s67, 3
    s_add_u32 s66, s66, s67
    v_and_b32 v20, 3, v1
    v_lshlrev_b32 v21, 4, v20
    v_lshrrev_b32 v22, 4, v1
    v_lshl_add_u32 v21, v22, 1, v21
    buffer_load_ushort v19, v21, s[4:7], s66 offen
    v_and_b32 v23, 15, v1
    v_lshlrev_b32 v24, 6, v23
    v_lshl_add_u32 v24, v22, 4, v24
    v_and_b32 v25, 1, v1
    v_lshlrev_b32 v25, 6, v25
    v_lshl_add_u32 v25, v22, 4, v25
    s_lshl_b32 s67, s2, 2
    s_add_u32 s67, s67, s3
    s_lshl_b32 s67, s67, 12
    s_add_u32 s67, s67, {FP}
    v_cmp_gt_u32 s[60:61], 2, v23
    v_cmp_eq_u32 s[62:63], 1, v20
    v_cmp_eq_u32 s[44:45], 2, v20
    v_cmp_eq_u32 s[46:47], 3, v20
    s_mov_b32 s65, {spin}
    L_fchk:
    buffer_load_dwordx4 v[32:35], v24, s[24:27], s67 offen sc1
    buffer_load_dwordx4 v[36:39], v24, s[24:27], s67 offen offset:1024 sc1
    buffer_load_dwordx4 v[40:43], v25, s[24:27], s67 offen offset:2048 sc1
    s_waitcnt vmcnt(0)
    """)
    check(32, 26); check(36, 28, 52); check(40, 26, 52)
    a(f"""
    s_cbranch_vccz L_fok
    s_sub_u32 s65, s65, 1
    s_cbranch_scc0 L_fchk
    L_fok:
    """)
    stamp("fok")
    for r in range(4): a(f"v_cndmask_b32 v{40+r}, 0, v{40+r}, s[60:61]")
    for r in range(4): a(f"v_add_f32 v{36+r}, v{36+r}, v{40+r}")
    for m in ("row_ror:8", "row_ror:4", "row_ror:2", "row_ror:1"):
        for r in range(8): a(f"v_add_f32_dpp v{32+r}, v{32+r}, v{32+r} {m} row_mask:0xf bank_mask:0xf")
    a(f"""
    v_cndmask_b32 v32, v32, v33, s[62:63]
    v_cndmask_b32 v36, v36, v37, s[62:63]
    v_cndmask_b32 v32, v32, v34, s[44:45]
    v_cndmask_b32 v36, v36, v38, s[44:45]
    v_cndmask_b32 v32, v32, v35, s[46:47]
    v_cndmask_b32 v36, v36, v39, s[46:47]
    v_cvt_pk_bf16_f32 v32, v32, v36
    v_and_b32 v36, s50, v32
    v_lshlrev_b32 v32, 16, v32
    v_mul_f32 v33, {hex(f2u(-1.4426950408889634))}, v36
    v_exp_f32 v33, v33
    v_lshlrev_b32 v19, 16, v19
    v_add_f32 v33, 1.0, v33
    v_rcp_f32 v33, v33
    v_cmp_gt_u32 vcc, 4, v23
    v_mul_f32 v33, v33, v36
    v_cvt_pk_bf16_f32 v33, v33, v33
    v_and_b32 v33, s50, v33
    v_mul_f32 v32, v32, v33
    v_cvt_pk_bf16_f32 v32, v32, v32
    v_and_b32 v32, s50, v32
    v_add_f32 v32, v32, v19
    v_cvt_pk_bf16_f32 v32, v32, v32
    s_mov_b64 exec, vcc
    buffer_store_short v32, v21, s[28:31], s66 offen
    s_mov_b64 exec, -1
    s_branch L_fin
    L_epoch:
    s_cmp_lg_u32 s2, 45
    s_cbranch_scc1 L_fin
    s_cmp_lg_u32 s3, 5
    s_cbranch_scc1 L_fin
    v_mov_b32 v20, 0
    s_mov_b32 s65, {spin}
    L_echk:
    buffer_load_dword v21, v20, s[32:35], 0 offen sc1
    s_waitcnt vmcnt(0)
    v_cmp_ne_u32 vcc, 256, v21
    s_cbranch_vccz L_eok
    s_sub_u32 s65, s65, 1
    s_cbranch_scc0 L_echk
    L_eok:
    v_mov_b32 v21, s48
    s_mov_b64 exec, 1
    buffer_store_dword v21, v20, s[24:27], 0 offen sc1
    s_mov_b64 exec, -1
    L_fin:
    """)
    if diag:
        stamp("end")
        a("s_waitcnt lgkmcnt(0)")
        a("s_lshl_b32 s41, s2, 3"); a("s_add_u32 s41, s41, s3"); a("s_lshl_b32 s41, s41, 7"); a(f"s_add_u32 s41, s41, {TS_OFF}")
        a("v_mov_b32 v20, 0")
        for k in range(16):
            a(f"v_mov_b32 v22, s{70+2*k}"); a(f"v_mov_b32 v23, s{71+2*k}")
            a(f"buffer_store_dwordx2 v[22:23], v20, s[24:27], s41 offen offset:{k*8}")
    a("L_end:"); a("s_endpgm")
    a('.section .rodata,"a"'); a(".p2align 6"); a(f".amdhsa_kernel {NAME}_kernel")
    a("  .amdhsa_next_free_vgpr 256"); a("  .amdhsa_next_free_sgpr 102"); a("  .amdhsa_accum_offset 256")
    a("  .amdhsa_group_segment_fixed_size 0"); a("  .amdhsa_kernarg_size 96"); a("  .amdhsa_user_sgpr_count 2")
    a("  .amdhsa_user_sgpr_kernarg_segment_ptr 1"); a("  .amdhsa_system_sgpr_workgroup_id_x 1"); a(".end_amdhsa_kernel")
    txt = a.finalize()
    return txt, ts
if __name__ == "__main__":
    txt, _ = gen()
    open("k.s", "w").write(txt)
    txt, ts = gen(diag=True)
    open("kd.s", "w").write(txt)
    print(ts)
```

```python
import sys, struct
from asmlib import Asm
NAME = "recurrent_scan__sliding_block_cached__geglu_ffn__decode"
def f2u(x): return struct.unpack("<I", struct.pack("<f", x))[0]

Y1 = 0x1000
OP = 0x40000
ST = 0x80000
FP = 0x90000
WS_USED = 0x120000
TS_OFF = 0x10000000
XSTR = 1168
XN = 0
QL = 4736
PL = QL + 4096
HB = PL + 4096
MX = HB + 2048
LS = MX + 64
OR = LS + 64
RED = OR + 8192
LDS_SIZE = RED + 49152
assert OR % 16 == 0 and RED % 16 == 0 and QL % 16 == 0

def gen(span=False, diag=False, NKA=6, spin=20000, ntw="nt", ntkv="nt"):
    a = Asm()
    hdr = open("cdna_kernels/" + NAME + ".s.ref").read().split("\n") if False else []
    a(f"; @launch grid=(256,1,1) block=(512,1,1) lds={LDS_SIZE}")
    a('.amdgcn_target "amdgcn-amd-amdhsa--gfx950"')
    a(".text"); a(f".globl {NAME}_kernel"); a(".p2align 8"); a(f".type {NAME}_kernel,@function"); a(f"{NAME}_kernel:")
    ts = []
    def stamp(name):
        if not diag: return
        s = 70 + 2 * len(ts); assert s + 1 <= 101
        ts.append(name); a(f"s_memrealtime s[{s}:{s+1}]")
    if diag:
        for s in range(70, 102): a(f"s_mov_b32 s{s}, 0")
    stamp("start")
    if span: a("s_memrealtime s[98:99]")
    K0, V0, W0, ACC = 64, 128, 192, 32
    a(f"""
    s_cmp_ge_u32 s2, 256
    s_cbranch_scc1 L_end
    s_load_dwordx2 s[4:5], s[0:1], 0
    s_load_dwordx2 s[8:9], s[0:1], 8
    s_load_dwordx2 s[24:25], s[0:1], 88
    s_mov_b32 s37, 8192
    s_mov_b32 s18, 4718592
    s_cmp_ge_u32 s2, 64
    s_cselect_b32 s36, 48, 24
    s_cselect_b32 s37, 9216, s37
    s_cselect_b32 s18, 5308416, s18
    s_cselect_b32 s38, 64, 0
    s_cmp_ge_u32 s2, 136
    s_cselect_b32 s36, 56, s36
    s_cselect_b32 s38, 136, s38
    s_load_dwordx2 s[16:17], s[0:1], s36
    v_lshrrev_b32 v20, 6, v0
    v_and_b32 v1, 63, v0
    s_mov_b32 s6, 4608
    v_readfirstlane_b32 s3, v20
    s_mov_b32 s7, 0x20000
    s_mov_b32 s10, 0x8000000
    s_mov_b32 s11, 0x20000
    s_mov_b32 s19, 0x20000
    s_mov_b32 s26, {0x20000000 if diag else WS_USED}
    s_mov_b32 s27, 0x20000
    """)
    a("""
    v_lshrrev_b32 v20, 4, v1
    v_bfe_u32 v21, v1, 3, 1
    v_lshl_add_u32 v21, v21, 2, v20
    v_and_b32 v22, 7, v1
    v_lshlrev_b32 v22, 4, v22
    v_mad_u32_u24 v5, v21, s37, v22
    s_lshl_b32 s40, s37, 3
    v_mad_u32_u24 v4, v21, s40, v22
    v_mul_u32_u24 v6, 4608, v21
    v_add_u32 v6, v6, v22
    v_lshlrev_b32 v3, 4, v1
    v_bfe_u32 v2, v1, 1, 3
    v_lshlrev_b32 v2, 8, v2
    v_lshl_add_u32 v2, v20, 5, v2
    v_and_b32 v22, 1, v1
    v_lshl_add_u32 v2, v22, 4, v2
    s_and_b32 s41, s3, 3
    s_mul_i32 s41, s41, 1152
    v_add_u32 v7, s41, v3
    v_mov_b32 v22, 0x100000
    v_cmp_gt_u32 vcc, 36, v1
    v_cndmask_b32 v7, v22, v7, vcc
    """)
    a("""
    s_sub_u32 s42, s2, s38
    s_lshl_b32 s42, s42, 7
    s_mul_i32 s44, s3, s40
    s_lshl_b32 s43, s37, 9
    s_add_u32 s43, s43, s44
    s_add_u32 s43, s43, s42
    s_lshl_b32 s44, s44, 3
    s_add_u32 s42, s42, s44
    """)
    a("""
    s_lshr_b32 s44, s2, 2
    s_lshl_b32 s44, s44, 21
    s_and_b32 s45, s2, 3
    s_lshl_b32 s45, s45, 17
    s_add_u32 s44, s44, s45
    s_lshl_b32 s45, s3, 14
    s_add_u32 s44, s44, s45
    s_add_u32 s44, s44, 0x180000
    s_add_u32 s45, s44, 4096
    s_add_u32 s46, s44, 8192
    s_add_u32 s47, s44, 12288
    s_cmp_ge_u32 s2, 208
    s_cselect_b32 s39, 32, 64
    s_waitcnt lgkmcnt(0)
    """)
    stamp("karg")
    def kload(G, ip):
        i = G * 2 + ip
        a(f"buffer_load_dwordx4 v[{K0+4*i}:{K0+4*i+3}], v2, s[8:11], s{44+(G>>1)} offen offset:{(G&1)*2048+ip*128} {ntkv}")
    def vload(t):
        a(f"buffer_load_dwordx4 v[{V0+4*t}:{V0+4*t+3}], v3, s[12:15], s{44+(t>>2)} offen offset:{(t&3)*1024} {ntkv}")
    def second_batch():
        a("""
        s_load_dwordx2 s[12:13], s[0:1], 16
        s_load_dwordx2 s[20:21], s[0:1], s39
        s_load_dwordx2 s[28:29], s[0:1], 72
        s_load_dwordx2 s[32:33], s[0:1], 80
        s_load_dword s48, s[24:25], 0
        """)
    a("s_setprio 3")
    a("s_cbranch_scc1 L_c_start")
    a(f"buffer_load_dwordx4 v[{V0}:{V0+3}], v7, s[4:7], 0 offen")
    a(f"buffer_load_dwordx4 v[{V0+4}:{V0+7}], v7, s[4:7], 0 offen offset:576")
    for j in range(8):
        a(f"buffer_load_dwordx4 v[{W0+4*j}:{W0+4*j+3}], v4, s[16:19], s42 offen {ntw}")
        if j < 7: a("s_add_u32 s42, s42, s37")
        if j == 1: second_batch()
    a(f"buffer_load_dwordx4 v[{W0+32}:{W0+35}], v5, s[16:19], s43 offen {ntw}")
    a("s_setprio 0")
    stamp("s1issued")
    X = V0; F = V0 + 8
    a("s_waitcnt vmcnt(9)")
    a("s_mov_b32 s50, 0xffff0000")
    for i in range(8):
        a(f"v_lshlrev_b32 v{F+2*i}, 16, v{X+i}")
        a(f"v_and_b32 v{F+2*i+1}, s50, v{X+i}")
    T = V0 + 24
    a(f"v_pk_add_f32 v[{T}:{T+1}], v[{F}:{F+1}], v[{F+2}:{F+3}]")
    for i in range(2, 8): a(f"v_pk_add_f32 v[{T}:{T+1}], v[{T}:{T+1}], v[{F+2*i}:{F+2*i+1}]")
    a(f"v_add_f32 v{T}, v{T}, v{T+1}")
    def wave_red(op, rs):
        for m in ("row_ror:8 row_mask:0xf", "row_ror:4 row_mask:0xf", "row_ror:2 row_mask:0xf", "row_ror:1 row_mask:0xf",
                  "row_bcast:15 row_mask:0xa", "row_bcast:31 row_mask:0xc"):
            for r in rs: a(f"{op}_dpp v{r}, v{r}, v{r} {m} bank_mask:0xf")
    wave_red("v_add_f32", [T])
    a(f"v_mul_f32 v{T}, {hex(f2u(1/576))}, v{T}")
    a(f"v_readlane_b32 s52, v{T}, 63")
    a("s_mov_b32 s53, s52")
    D = V0 + 26
    for i in range(8):
        a(f"v_pk_add_f32 v[{D}:{D+1}], v[{F+2*i}:{F+2*i+1}], s[52:53] neg_lo:[0,1] neg_hi:[0,1]")
        if i == 0: a(f"v_pk_mul_f32 v[{T}:{T+1}], v[{D}:{D+1}], v[{D}:{D+1}]")
        else: a(f"v_pk_fma_f32 v[{T}:{T+1}], v[{D}:{D+1}], v[{D}:{D+1}], v[{T}:{T+1}]")
    a(f"v_add_f32 v{T}, v{T}, v{T+1}")
    a(f"v_cndmask_b32 v{T}, 0, v{T}, vcc")
    wave_red("v_add_f32", [T])
    a(f"v_mul_f32 v{T}, {hex(f2u(1/576))}, v{T}")
    a(f"v_readlane_b32 s54, v{T}, 63")
    a(f"v_mov_b32 v{T}, s52")
    a(f"v_mov_b32 v{T+1}, s54")
    a(f"v_cvt_pk_bf16_f32 v{T}, v{T}, v{T+1}")
    a(f"v_and_b32 v{T+1}, s50, v{T}")
    a(f"v_lshlrev_b32 v{D}, 16, v{T}")
    a(f"v_mov_b32 v{D+1}, v{D}")
    a(f"v_add_f32 v{T+1}, {hex(f2u(1e-5))}, v{T+1}")
    a(f"v_cvt_pk_bf16_f32 v{T+1}, v{T+1}, v{T+1}")
    a(f"v_and_b32 v{T+1}, s50, v{T+1}")
    a(f"v_sqrt_f32 v{T+1}, v{T+1}")
    a(f"v_cvt_pk_bf16_f32 v{T+1}, v{T+1}, v{T+1}")
    a(f"v_and_b32 v{T+1}, s50, v{T+1}")
    a(f"v_rcp_f32 v{T}, v{T+1}")
    a(f"v_mov_b32 v{T+1}, v{T}")
    for i in range(8):
        a(f"v_pk_add_f32 v[{F+2*i}:{F+2*i+1}], v[{F+2*i}:{F+2*i+1}], v[{D}:{D+1}] neg_lo:[0,1] neg_hi:[0,1]")
    for i in range(8): a(f"v_cvt_pk_bf16_f32 v{X+i}, v{F+2*i}, v{F+2*i+1}")
    for i in range(8):
        a(f"v_lshlrev_b32 v{F+2*i}, 16, v{X+i}")
        a(f"v_and_b32 v{F+2*i+1}, s50, v{X+i}")
    for i in range(8): a(f"v_pk_mul_f32 v[{F+2*i}:{F+2*i+1}], v[{F+2*i}:{F+2*i+1}], v[{T}:{T+1}]")
    for i in range(8): a(f"v_cvt_pk_bf16_f32 v{X+i}, v{F+2*i}, v{F+2*i+1}")
    a(f"""
    s_and_b32 s41, s3, 3
    s_mul_i32 s41, s41, {XSTR}
    v_add_u32 v20, s41, v3
    s_mov_b32 exec_hi, 0xf
    ds_write_b128 v20, v[{X}:{X+3}] offset:{XN}
    ds_write_b128 v20, v[{X+4}:{X+7}] offset:{XN+576}
    s_mov_b64 exec, -1
    s_setprio 2
    """)
    stamp("ln")
    for i in range(NKA): kload(i >> 1, i & 1)
    a("s_setprio 0")
    a(f"""
    v_and_b32 v20, 3, v1
    v_mul_u32_u24 v20, {XSTR}, v20
    v_bfe_u32 v21, v1, 2, 1
    v_lshrrev_b32 v22, 4, v1
    v_lshl_add_u32 v21, v21, 2, v22
    s_lshl_b32 s41, s3, 7
    v_lshl_add_u32 v22, v21, 4, v20
    v_add_u32 v22, s41, v22
    s_lshl_b32 s41, s3, 4
    v_lshl_add_u32 v23, v21, 1, v20
    v_add_u32 v23, s41, v23
    s_waitcnt lgkmcnt(0)
    s_barrier
    ds_read_b128 v[24:27], v22 offset:{XN}
    ds_read_u16 v28, v23 offset:{XN+1024}
    """)
    common_setup_done = False
    def common_setup():
        a(f"""
        s_add_u32 s48, s48, 0x01010101
        s_mov_b32 s50, 0xffff0000
        s_mov_b32 s51, 0xffffff00
        s_mov_b32 s55, 0x05040100
        s_mov_b32 s56, 0x07060302
        s_mov_b32 s57, 0x0c0c0400
        s_mov_b32 s58, 0x04000c0c
        s_mov_b32 s14, 0x8000000
        s_mov_b32 s15, 0x20000
        s_mov_b32 s23, 0x20000
        s_mov_b32 s30, 4608
        s_mov_b32 s31, 0x20000
        s_mov_b32 s34, 256
        s_mov_b32 s35, 0x20000
        s_and_b32 s41, s48, 0xff
        v_mov_b32 v8, s41
        s_bfe_u32 s41, s48, 0x80008
        v_mov_b32 v9, s41
        s_bfe_u32 s41, s48, 0x80010
        v_mov_b32 v10, s41
        s_lshr_b32 s41, s48, 24
        v_mov_b32 v11, s41
        """)
        a(f"""
        v_lshrrev_b32 v18, 5, v1
        v_lshlrev_b32 v18, 10, v18
        v_bfe_u32 v19, v1, 4, 1
        v_lshl_add_u32 v18, v19, 6, v18
        v_and_b32 v19, 3, v1
        v_lshl_add_u32 v18, v19, 4, v18
        s_lshl_b32 s41, s3, 11
        s_add_u32 s41, s41, {RED}
        v_add_u32 v18, s41, v18
        """)
        a(f"""
        s_cmp_lg_u32 s3, 7
        s_cbranch_scc1 L_nocnt{common_setup.n}
        v_mov_b32 v19, 1
        v_mov_b32 v29, 0
        s_mov_b64 exec, 1
        buffer_atomic_add v19, v29, s[32:35], 0 offen sc1
        s_mov_b64 exec, -1
        L_nocnt{common_setup.n}:
        """)
        common_setup.n += 1
    common_setup.n = 0
    common_setup()
    B2 = V0 + 8
    a(f"""
    s_waitcnt lgkmcnt(0)
    v_mov_b32 v{B2}, v28
    v_mov_b32 v{B2+1}, 0
    v_lshlrev_b32 v{B2+2}, 16, v28
    v_mov_b32 v{B2+3}, 0
    v_mov_b32 v{B2+4}, 0
    v_mov_b32 v{B2+5}, v28
    v_mov_b32 v{B2+6}, 0
    v_lshlrev_b32 v{B2+7}, 16, v28
    s_waitcnt vmcnt({NKA})
    """)
    stamp("s1data")
    TQ = V0 + 16
    for e in range(8):
        i = e >> 1; sel = 55 + (e & 1); t = TQ + 4 * e
        for jj in range(4):
            a(f"v_perm_b32 v{t+jj}, v{W0+4*(2*jj+1)+i}, v{W0+4*(2*jj)+i}, s{sel}")
        if e >= 1:
            tp = TQ + 4 * (e - 1)
            a(f"v_mfma_f32_16x16x32_bf16 v[{ACC+4*(e-1)}:{ACC+4*(e-1)+3}], v[{tp}:{tp+3}], v[24:27], 0")
    tp = TQ + 28
    a(f"v_mfma_f32_16x16x32_bf16 v[{ACC+28}:{ACC+31}], v[{tp}:{tp+3}], v[24:27], 0")
    for e in range(8):
        p = W0 + 32 + 2 * (e >> 2); bb = B2 + 2 * (e & 3)
        a(f"v_mfma_f32_16x16x16_bf16 v[{ACC+4*e}:{ACC+4*e+3}], v[{p}:{p+1}], v[{bb}:{bb+1}], v[{ACC+4*e}:{ACC+4*e+3}]")
    VALID = "0x00f000f0000f000f"
    def red_write(acc, blk):
        for e in range(8): a(f"ds_write_b128 v18, v[{acc+4*e}:{acc+4*e+3}] offset:{blk*16384+e*128}")
    a(f"s_mov_b32 exec_lo, 0x000f000f"); a("s_mov_b32 exec_hi, 0x00f000f0")
    red_write(ACC, 0)
    a("s_mov_b64 exec, -1")
    a("s_waitcnt lgkmcnt(0)"); a("s_barrier")
    def red_sum(vaddr, R):
        for p in range(16): a(f"ds_read_b128 v[{R+4*p}:{R+4*p+3}], v{vaddr} offset:{RED+p*1024}")
        n = 16
        a("s_waitcnt lgkmcnt(8)")
        for p in range(1, 8):
            a(f"v_pk_add_f32 v[{R}:{R+1}], v[{R}:{R+1}], v[{R+4*p}:{R+4*p+1}]")
            a(f"v_pk_add_f32 v[{R+2}:{R+3}], v[{R+2}:{R+3}], v[{R+4*p+2}:{R+4*p+3}]")
        a("s_waitcnt lgkmcnt(0)")
        for p in range(8, 16):
            a(f"v_pk_add_f32 v[{R}:{R+1}], v[{R}:{R+1}], v[{R+4*p}:{R+4*p+1}]")
            a(f"v_pk_add_f32 v[{R+2}:{R+3}], v[{R+2}:{R+3}], v[{R+4*p+2}:{R+4*p+3}]")
    def tag(R):
        for i in range(4): a(f"v_and_or_b32 v{R+i}, v{R+i}, s51, v{8+i}")
    def check(R, t0, acc=None):
        a(f"v_perm_b32 v{t0}, v{R+1}, v{R}, s57")
        a(f"v_perm_b32 v{t0+1}, v{R+3}, v{R+2}, s58")
        a(f"v_or_b32 v{t0}, v{t0}, v{t0+1}")
        if acc is None: a(f"v_cmp_ne_u32 vcc, s48, v{t0}")
        else:
            a(f"v_cmp_ne_u32 s[{acc}:{acc+1}], s48, v{t0}")
            a(f"s_or_b64 vcc, vcc, s[{acc}:{acc+1}]")
    a("s_cmp_lg_u32 s3, 0"); a("s_cbranch_scc1 L_s1done")
    a("s_setprio 3")
    R = V0
    red_sum(3, R)
    a(f"""
    v_cvt_pk_bf16_f32 v{R+4}, v{R}, v{R+1}
    v_cvt_pk_bf16_f32 v{R+5}, v{R+2}, v{R+3}
    v_lshl_or_b32 v{R}, v{R+4}, 16, v8
    v_and_or_b32 v{R+1}, v{R+4}, s50, v9
    v_lshl_or_b32 v{R+2}, v{R+5}, 16, v10
    v_and_or_b32 v{R+3}, v{R+5}, s50, v11
    v_and_b32 v20, 3, v1
    v_lshlrev_b32 v20, 8, v20
    v_bfe_u32 v21, v1, 2, 1
    v_lshl_add_u32 v20, v21, 7, v20
    v_lshrrev_b32 v21, 3, v1
    v_lshl_add_u32 v20, v21, 4, v20
    s_lshl_b32 s41, s2, 10
    s_add_u32 s41, s41, {Y1}
    buffer_store_dwordx4 v[{R}:{R+3}], v20, s[24:27], s41 offen sc1
    """)
    stamp("s1pub")
    a("L_s1done:")
    a("s_setprio 2")
    a("s_branch L_kb")
    a("L_c_start:")
    a("s_setprio 2")
    kload(0, 0); kload(0, 1)
    second_batch()
    for i in range(2, NKA): kload(i >> 1, i & 1)
    a("s_waitcnt lgkmcnt(0)")
    common_setup()
    a("L_kb:")
    for i in range(NKA, 16): kload(i >> 1, i & 1)
    a("s_setprio 1")
    for t in range(8): vload(t)
    a(f"""
    s_cmp_ge_u32 s2, 208
    s_cbranch_scc1 L_dec_c
    s_sub_u32 s41, s2, 46
    s_mul_i32 s62, s41, 57
    s_lshr_b32 s62, s62, 9
    s_mul_i32 s60, s62, 9
    s_sub_u32 s60, s41, s60
    s_add_u32 s59, s62, 16
    s_cmp_ge_u32 s2, 46
    s_cselect_b32 s22, 5308416, 0
    s_cselect_b32 s62, s62, 0
    s_branch L_dec_j
    L_dec_c:
    s_sub_u32 s41, s2, 208
    s_mul_i32 s62, s41, 43
    s_lshr_b32 s62, s62, 7
    s_mul_i32 s60, s62, 3
    s_sub_u32 s60, s41, s60
    s_mul_i32 s60, s60, 3
    s_mov_b32 s59, s62
    s_mov_b32 s22, 4718592
    L_dec_j:
    s_lshl_b32 s61, s62, 3
    s_add_u32 s61, s61, s3
    s_mul_i32 s61, s61, {32*1152}
    s_lshl_b32 s41, s60, 7
    s_add_u32 s61, s61, s41
    """)
    a(f"""
    v_lshrrev_b32 v16, 4, v1
    v_lshlrev_b32 v16, 10, v16
    v_and_b32 v20, 15, v1
    v_lshl_add_u32 v16, v20, 4, v16
    s_bfe_u32 s41, s2, 0x40002
    s_lshl_b32 s41, s41, 12
    s_lshr_b32 s63, s2, 6
    s_lshl_b32 s63, s63, 8
    s_add_u32 s63, s63, s41
    s_add_u32 s63, s63, {Y1}
    v_lshrrev_b32 v17, 5, v1
    v_mul_u32_u24 v17, {72*1024}, v17
    v_bfe_u32 v20, v1, 3, 2
    v_lshl_add_u32 v17, v20, 8, v17
    v_and_b32 v20, 7, v1
    v_lshl_add_u32 v17, v20, 4, v17
    s_lshl_b32 s64, s62, 12
    s_lshl_b32 s41, s3, 9
    s_and_b32 s41, s41, 0xc00
    s_add_u32 s64, s64, s41
    s_and_b32 s41, s3, 1
    s_lshl_b32 s41, s41, 7
    s_add_u32 s64, s64, s41
    s_add_u32 s64, s64, {Y1 + 64*1024}
    buffer_load_dwordx4 v[244:247], v16, s[24:27], s63 offen sc1
    buffer_load_dwordx4 v[248:251], v17, s[24:27], s64 offen sc1
    """)
    for t in range(8, 16): vload(t)
    a("s_setprio 0")
    stamp("vissued")
    a(f"""
    v_lshrrev_b32 v20, 3, v1
    v_lshlrev_b32 v20, 6, v20
    v_and_b32 v21, 7, v1
    v_lshl_add_u32 v20, v21, 1, v20
    s_lshl_b32 s41, s3, 9
    v_add_u32 v20, s41, v20
    v_and_b32 v21, 1, v1
    v_lshlrev_b32 v21, 8, v21
    v_lshrrev_b32 v22, 4, v1
    v_lshl_add_u32 v21, v22, 5, v21
    v_bfe_u32 v22, v1, 1, 1
    v_lshl_add_u32 v21, v22, 4, v21
    v_add_u32 v21, s41, v21
    s_mov_b32 s65, {spin}
    s_waitcnt vmcnt(8)
    L_qchk:
    """)
    check(244, 22)
    a(f"""
    s_cbranch_vccz L_qok
    s_sub_u32 s65, s65, 1
    s_cbranch_scc1 L_qok
    buffer_load_dwordx4 v[244:247], v16, s[24:27], s63 offen sc1
    s_waitcnt vmcnt(0)
    s_branch L_qchk
    L_qok:
    """)
    stamp("qok")
    for r in range(4): a(f"ds_write_b16_d16_hi v20, v{244+r} offset:{QL+16*r}")
    a(f"ds_read_b128 v[24:27], v21 offset:{QL}")
    a(f"ds_read_b128 v[28:31], v21 offset:{QL+128}")
    a(f"""
    s_sub_u32 s41, s2, 46
    s_cmp_ge_u32 s41, 162
    s_cbranch_scc1 L_noh
    L_guchk:
    """)
    check(248, 22)
    a(f"""
    s_cbranch_vccz L_guok
    s_sub_u32 s65, s65, 1
    s_cbranch_scc1 L_guok
    buffer_load_dwordx4 v[248:251], v17, s[24:27], s64 offen sc1
    s_waitcnt vmcnt(0)
    s_branch L_guchk
    L_guok:
    v_permlane32_swap_b32 v248, v250
    v_permlane32_swap_b32 v249, v251
    s_mov_b32 s41, {hex(f2u(2*0.7978845608028654*1.4426950408889634*0.044715))}
    v_mov_b32 v252, {hex(f2u(2*0.7978845608028654*1.4426950408889634))}
    """)
    for r in range(4): a(f"v_and_b32 v{248+r}, s50, v{248+r}")
    for r in range(2): a(f"v_mul_f32 v{244+r}, v{248+r}, v{248+r}")
    for r in range(2): a(f"v_fma_f32 v{244+r}, v{244+r}, s41, v252")
    for r in range(2): a(f"v_mul_f32 v{244+r}, v{244+r}, v{248+r}")
    for r in range(2): a(f"v_exp_f32 v{244+r}, -v{244+r}")
    for r in range(2): a(f"v_add_f32 v{244+r}, 1.0, v{244+r}")
    for r in range(2): a(f"v_rcp_f32 v{244+r}, v{244+r}")
    for r in range(2): a(f"v_mul_f32 v{244+r}, v{244+r}, v{248+r}")
    a(f"""
    v_cvt_pk_bf16_f32 v244, v244, v245
    v_and_b32 v245, s50, v244
    v_lshlrev_b32 v244, 16, v244
    v_mul_f32 v244, v244, v250
    v_mul_f32 v245, v245, v251
    v_cvt_pk_bf16_f32 v244, v244, v245
    v_bfe_u32 v22, v1, 3, 2
    v_lshlrev_b32 v22, 6, v22
    v_lshrrev_b32 v23, 5, v1
    v_lshl_add_u32 v22, v23, 5, v22
    v_and_b32 v23, 7, v1
    v_lshl_add_u32 v22, v23, 1, v22
    s_lshl_b32 s41, s3, 8
    v_add_u32 v22, s41, v22
    ds_write_b16 v22, v244 offset:{HB}
    ds_write_b16_d16_hi v22, v244 offset:{HB+16}
    L_noh:
    s_mov_b32 s66, 0x000f000f
    s_mov_b32 s67, 0x000f000f
    s_waitcnt lgkmcnt(0)
    """)
    for t in range(4):
        for ip in range(2):
            for r in range(4):
                a(f"v_cndmask_b32 v{ACC+(t*2+ip)*4+r}, 0, v{24+4*ip+r}, s[66:67]")
        if t < 3: a("s_lshl_b64 s[66:67], s[66:67], 4")
    for G4 in range(4):
        for ip in range(2):
            for par in range(2):
                G = par * 4 + G4; i = G * 2 + ip
                A = ACC + (G4 * 2 + ip) * 4; Dd = 20 + 4 * par
                C = "0" if (G4 == 0 and ip == 0) else f"v[{Dd}:{Dd+3}]"
                a(f"v_mfma_f32_16x16x32_bf16 v[{Dd}:{Dd+3}], v[{A}:{A+3}], v[{K0+4*i}:{K0+4*i+3}], {C}")
    a(f"""
    s_mov_b32 s66, 0xaaaaaaaa
    s_mov_b32 s67, 0xaaaaaaaa
    s_mov_b32 s41, {hex(f2u(128 ** -0.5))}
    v_add_f32_dpp v20, v22, v20 quad_perm:[1,0,3,2] row_mask:0xf bank_mask:0xf
    v_add_f32_dpp v21, v23, v21 quad_perm:[1,0,3,2] row_mask:0xf bank_mask:0xf
    v_add_f32_dpp v26, v24, v26 quad_perm:[1,0,3,2] row_mask:0xf bank_mask:0xf
    v_add_f32_dpp v27, v25, v27 quad_perm:[1,0,3,2] row_mask:0xf bank_mask:0xf
    v_cndmask_b32 v20, v20, v26, s[66:67]
    v_cndmask_b32 v21, v21, v27, s[66:67]
    v_cvt_pk_bf16_f32 v22, v20, v21
    v_lshlrev_b32 v20, 16, v22
    v_and_b32 v21, s50, v22
    v_mul_f32 v20, s41, v20
    v_mul_f32 v21, s41, v21
    v_cvt_pk_bf16_f32 v22, v20, v21
    s_mov_b32 s41, {hex(f2u(1.4426950408889634))}
    v_lshlrev_b32 v20, 16, v22
    v_and_b32 v21, s50, v22
    v_mul_f32 v20, s41, v20
    v_mul_f32 v21, s41, v21
    v_mov_b32 v22, v20
    v_mov_b32 v23, v21
    """)
    wave_red("v_max_f32", [22, 23])
    a(f"""
    s_lshl_b32 s41, s3, 3
    v_mov_b32 v24, s41
    s_mov_b32 exec_lo, 0
    s_mov_b32 exec_hi, 0x80000000
    ds_write_b64 v24, v[22:23] offset:{MX}
    s_mov_b64 exec, -1
    v_mov_b32 v24, 0
    s_waitcnt lgkmcnt(0)
    s_barrier
    ds_read_b128 v[32:35], v24 offset:{MX}
    ds_read_b128 v[36:39], v24 offset:{MX+16}
    ds_read_b128 v[40:43], v24 offset:{MX+32}
    ds_read_b128 v[44:47], v24 offset:{MX+48}
    """)
    stamp("qk")
    def s3load(blk):
        base = (W0 + 36) if blk == 0 else (W0 + 16 * (blk - 1))
        for j in range(4):
            a(f"buffer_load_dwordx4 v[{base+4*j}:{base+4*j+3}], v6, s[20:23], s61 offen offset:{j*1152+blk*128} {ntw}")
        return base
    s3load(0)
    a(f"""
    v_bfe_u32 v25, v1, 1, 2
    v_lshlrev_b32 v25, 6, v25
    v_and_b32 v26, 1, v1
    v_lshl_add_u32 v25, v26, 5, v25
    v_lshrrev_b32 v26, 4, v1
    v_lshl_add_u32 v25, v26, 3, v25
    v_bfe_u32 v27, v1, 3, 1
    v_lshl_add_u32 v25, v27, 2, v25
    s_lshl_b32 s41, s3, 9
    v_add_u32 v25, s41, v25
    v_lshl_add_u32 v26, v27, 2, v26
    v_lshlrev_b32 v26, 6, v26
    v_add_u32 v26, s41, v26
    v_and_b32 v27, 1, v1
    v_lshlrev_b32 v27, 4, v27
    v_mov_b32 v28, 0xffff
    v_lshlrev_b32 v27, v27, v28
    v_bfe_u32 v28, v1, 1, 2
    """)
    for i in range(4):
        a(f"v_cmp_eq_u32 vcc, {i}, v28")
        a(f"v_cndmask_b32 v{12+i}, 0, v27, vcc")
    a(f"""
    s_waitcnt lgkmcnt(0)
    v_max3_f32 v22, v32, v34, v36
    v_max3_f32 v23, v33, v35, v37
    v_max3_f32 v22, v22, v38, v40
    v_max3_f32 v23, v23, v39, v41
    v_max3_f32 v22, v22, v42, v44
    v_max3_f32 v23, v23, v43, v45
    v_max_f32 v22, v22, v46
    v_max_f32 v23, v23, v47
    v_and_b32 v30, s51, v22
    v_and_b32 v31, s51, v23
    v_sub_f32 v20, v20, v30
    v_sub_f32 v21, v21, v31
    v_exp_f32 v20, v20
    v_exp_f32 v21, v21
    v_cvt_pk_bf16_f32 v22, v20, v20
    v_cvt_pk_bf16_f32 v23, v21, v21
    ds_write_b32 v25, v22 offset:{PL}
    ds_write_b32 v25, v23 offset:{PL+256}
    ds_read_b128 v[32:35], v26 offset:{PL}
    ds_read_b128 v[36:39], v26 offset:{PL+16}
    ds_read_b128 v[40:43], v26 offset:{PL+32}
    ds_read_b128 v[44:47], v26 offset:{PL+48}
    """)
    wave_red("v_add_f32", [20, 21])
    a(f"""
    s_lshl_b32 s41, s3, 2
    v_mov_b32 v24, s41
    s_mov_b32 exec_lo, 0
    s_mov_b32 exec_hi, 0x80000000
    ds_write_b32 v24, v20 offset:{LS}
    ds_write_b32 v24, v21 offset:{LS+32}
    s_mov_b64 exec, -1
    s_waitcnt lgkmcnt(0)
    """)
    def bbuild(t):
        b = 48 + 4 * (t % 3)
        for i in range(4): a(f"v_and_b32 v{b+i}, v{12+i}, v{32+t}")
    bbuild(0)
    for t in range(16):
        if t + 1 < 16: bbuild(t + 1)
        if t >= 8: a(f"s_waitcnt vmcnt({15-t+4})")
        b = 48 + 4 * (t % 3)
        C = "0" if t == 0 else "v[60:63]"
        a(f"v_mfma_f32_16x16x32_bf16 v[60:63], v[{V0+4*t}:{V0+4*t+3}], v[{b}:{b+3}], {C}")
    stamp("pv")
    a("s_cmp_lt_u32 s2, 208"); a("s_cbranch_scc1 L_nos3bc")
    s3load(1); s3load(2)
    a("L_nos3bc:")
    a(f"""
    s_lshl_b32 s41, s3, 10
    v_add_u32 v24, s41, v3
    s_nop 4
    ds_write_b128 v24, v[60:63] offset:{OR}
    s_waitcnt lgkmcnt(0)
    s_barrier
    s_lshr_b32 s66, s2, 6
    s_bfe_u32 s67, s2, 0x40002
    s_lshl_b32 s67, s67, 2
    s_add_u32 s66, s66, s67
    s_and_b32 s67, s2, 3
    s_cmp_lg_u32 s3, 6
    s_cbranch_scc1 L_noopub
    s_setprio 3
    """)
    R = V0
    for p in range(8): a(f"ds_read_b128 v[{R+4*p}:{R+4*p+3}], v3 offset:{OR+p*1024}")
    a(f"""
    v_bfe_u32 v24, v1, 3, 1
    v_lshlrev_b32 v24, 11, v24
    v_lshrrev_b32 v25, 4, v1
    v_lshl_add_u32 v24, v25, 7, v24
    v_and_b32 v25, 7, v1
    v_lshl_add_u32 v24, v25, 4, v24
    s_lshl_b32 s41, s66, 12
    s_lshl_b32 s68, s67, 9
    s_add_u32 s41, s41, s68
    s_add_u32 s41, s41, {OP}
    s_waitcnt lgkmcnt(4)
    """)
    for p in range(1, 8):
        if p == 4: a("s_waitcnt lgkmcnt(0)")
        a(f"v_pk_add_f32 v[{R}:{R+1}], v[{R}:{R+1}], v[{R+4*p}:{R+4*p+1}]")
        a(f"v_pk_add_f32 v[{R+2}:{R+3}], v[{R+2}:{R+3}], v[{R+4*p+2}:{R+4*p+3}]")
    tag(R)
    a(f"buffer_store_dwordx4 v[{R}:{R+3}], v24, s[24:27], s41 offen sc1")
    stamp("opub")
    a(f"""
    s_setprio 0
    s_waitcnt vmcnt(1)
    s_branch L_s3go
    L_noopub:
    s_cmp_lg_u32 s3, 7
    s_cbranch_scc1 L_nospub
    s_setprio 3
    v_and_b32 v24, 1, v1
    v_lshlrev_b32 v25, 5, v24
    ds_read_b128 v[{R}:{R+3}], v25 offset:{LS}
    ds_read_b128 v[{R+4}:{R+7}], v25 offset:{LS+16}
    v_cmp_eq_u32 vcc, 1, v24
    v_cndmask_b32 v{R+8}, v30, v31, vcc
    v_lshlrev_b32 v24, 4, v24
    s_lshl_b32 s41, s66, 7
    s_lshl_b32 s68, s67, 5
    s_add_u32 s41, s41, s68
    s_add_u32 s41, s41, {ST}
    s_waitcnt lgkmcnt(0)
    v_pk_add_f32 v[{R}:{R+1}], v[{R}:{R+1}], v[{R+2}:{R+3}]
    v_pk_add_f32 v[{R+4}:{R+5}], v[{R+4}:{R+5}], v[{R+6}:{R+7}]
    v_pk_add_f32 v[{R}:{R+1}], v[{R}:{R+1}], v[{R+4}:{R+5}]
    v_add_f32 v{R+9}, v{R}, v{R+1}
    v_mov_b32 v{R+10}, v{R+8}
    v_mov_b32 v{R+11}, v{R+9}
    """)
    tag(R + 8)
    a(f"""
    s_mov_b64 exec, 3
    buffer_store_dwordx4 v[{R+8}:{R+11}], v24, s[24:27], s41 offen sc1
    s_mov_b64 exec, -1
    s_setprio 0
    s_waitcnt vmcnt(1)
    s_branch L_s3go
    L_nospub:
    s_waitcnt vmcnt(0)
    L_s3go:
    s_cmp_lt_u32 s2, 46
    s_cbranch_scc1 L_final
    """)
    stamp("s3data")
    a(f"""
    v_and_b32 v19, 3, v1
    v_lshlrev_b32 v19, 6, v19
    v_bfe_u32 v20, v1, 2, 1
    v_lshl_add_u32 v19, v20, 5, v19
    v_lshrrev_b32 v20, 4, v1
    v_lshl_add_u32 v19, v20, 3, v19
    s_lshl_b32 s41, s3, 8
    v_add_u32 v19, s41, v19
    """)
    def transp(src, dst):
        for e in range(8):
            i = e >> 1; sel = 55 + (e & 1)
            for jj in range(2):
                a(f"v_perm_b32 v{dst+2*e+jj}, v{src+4*(2*jj+1)+i}, v{src+4*(2*jj)+i}, s{sel}")
    transp(W0 + 36, K0)
    a("s_cmp_lt_u32 s2, 208"); a("s_cbranch_scc1 L_mm")
    transp(W0, K0 + 16); transp(W0 + 16, K0 + 32)
    a(f"""
    v_and_b32 v20, 3, v1
    v_lshlrev_b32 v21, 9, v20
    v_bfe_u32 v22, v1, 2, 3
    v_lshl_add_u32 v21, v22, 4, v21
    v_lshrrev_b32 v23, 5, v1
    v_lshl_add_u32 v21, v23, 12, v21
    v_lshlrev_b32 v20, 5, v20
    v_lshl_add_u32 v20, v23, 7, v20
    s_lshl_b32 s66, s62, 14
    s_lshr_b32 s41, s3, 2
    s_lshl_b32 s67, s41, 11
    s_add_u32 s66, s66, s67
    s_and_b32 s67, s3, 3
    s_lshl_b32 s67, s67, 7
    s_add_u32 s66, s66, s67
    s_add_u32 s66, s66, {OP}
    s_add_u32 s68, s66, 8192
    s_lshl_b32 s67, s62, 9
    s_lshl_b32 s41, s41, 4
    s_add_u32 s67, s67, s41
    s_add_u32 s67, s67, {ST}
    v_lshlrev_b32 v22, 1, v22
    v_lshl_add_u32 v22, v23, 6, v22
    s_lshl_b32 s41, s3, 8
    v_add_u32 v22, s41, v22
    s_mov_b32 s65, {spin}
    L_ochk:
    buffer_load_dwordx4 v[32:35], v21, s[24:27], s66 offen sc1
    buffer_load_dwordx4 v[36:39], v21, s[24:27], s68 offen sc1
    buffer_load_dwordx4 v[40:43], v20, s[24:27], s67 offen sc1
    buffer_load_dwordx4 v[44:47], v20, s[24:27], s67 offen offset:256 sc1
    s_waitcnt vmcnt(0)
    """)
    check(32, 24); check(36, 26, 52); check(40, 24, 52); check(44, 26, 52)
    a(f"""
    s_cbranch_vccz L_ook
    s_sub_u32 s65, s65, 1
    s_cbranch_scc0 L_ochk
    L_ook:
    """)
    stamp("ook")
    a("v_and_b32 v40, s51, v40"); a("v_and_b32 v44, s51, v44")
    for q in ("[1,0,3,2]", "[2,3,0,1]"):
        src = (40, 44) if q == "[1,0,3,2]" else (42, 46)
        a(f"v_max_f32_dpp v42, v{src[0]}, v{src[0]} quad_perm:{q} row_mask:0xf bank_mask:0xf")
        a(f"v_max_f32_dpp v46, v{src[1]}, v{src[1]} quad_perm:{q} row_mask:0xf bank_mask:0xf")
    a("""
    v_sub_f32 v40, v40, v42
    v_sub_f32 v44, v44, v46
    v_exp_f32 v40, v40
    v_exp_f32 v44, v44
    v_mul_f32 v41, v41, v40
    v_mul_f32 v45, v45, v44
    v_add_f32_dpp v41, v41, v41 quad_perm:[1,0,3,2] row_mask:0xf bank_mask:0xf
    v_add_f32_dpp v45, v45, v45 quad_perm:[1,0,3,2] row_mask:0xf bank_mask:0xf
    v_add_f32_dpp v41, v41, v41 quad_perm:[2,3,0,1] row_mask:0xf bank_mask:0xf
    v_add_f32_dpp v45, v45, v45 quad_perm:[2,3,0,1] row_mask:0xf bank_mask:0xf
    v_rcp_f32 v41, v41
    v_rcp_f32 v45, v45
    v_mul_f32 v40, v40, v41
    v_mul_f32 v44, v44, v45
    """)
    for r in range(4): a(f"v_mul_f32 v{32+r}, v{32+r}, v40")
    for r in range(4): a(f"v_mul_f32 v{36+r}, v{36+r}, v44")
    for q in ("[1,0,3,2]", "[2,3,0,1]"):
        for r in range(8): a(f"v_add_f32_dpp v{32+r}, v{32+r}, v{32+r} quad_perm:{q} row_mask:0xf bank_mask:0xf")
    for i in range(2):
        for rp in range(2):
            a(f"v_cvt_pk_bf16_f32 v{40+2*i+rp}, v{32+4*i+2*rp}, v{32+4*i+2*rp+1}")
    for i in range(2):
        for rp in range(2):
            a(f"ds_write_b16 v22, v{40+2*i+rp} offset:{HB+i*128+rp*32}")
            a(f"ds_write_b16_d16_hi v22, v{40+2*i+rp} offset:{HB+i*128+rp*32+16}")
    a("L_mm:")
    a(f"ds_read_b64 v[20:21], v19 offset:{HB}")
    a("s_waitcnt lgkmcnt(0)")
    accs = [V0, V0 + 32, ACC]
    def mm(blk):
        for e in range(8):
            t = K0 + 16 * blk + 2 * e; d = accs[blk] + 4 * e
            a(f"v_mfma_f32_16x16x16_bf16 v[{d}:{d+3}], v[{t}:{t+1}], v[20:21], 0")
    mm(0)
    a("s_cmp_lt_u32 s2, 208"); a("s_cbranch_scc1 L_mm1")
    mm(1); mm(2)
    a(f"s_mov_b32 exec_lo, 0x000f000f"); a("s_mov_b32 exec_hi, 0x00f000f0")
    red_write(accs[1], 1); red_write(accs[2], 2)
    a("L_mm1:")
    a(f"s_mov_b32 exec_lo, 0x000f000f"); a("s_mov_b32 exec_hi, 0x00f000f0")
    a("s_nop 7")
    red_write(accs[0], 0)
    a("s_mov_b64 exec, -1")
    a(f"""
    v_and_b32 v20, 3, v1
    v_mul_u32_u24 v20, {36*4096}, v20
    v_bfe_u32 v21, v1, 2, 1
    v_lshl_add_u32 v20, v21, 13, v20
    v_lshrrev_b32 v21, 5, v1
    v_lshl_add_u32 v20, v21, 12, v20
    v_bfe_u32 v21, v1, 3, 2
    v_lshl_add_u32 v20, v21, 4, v20
    s_add_u32 s41, s60, s3
    s_lshl_b32 s41, s41, 14
    s_lshl_b32 s66, s59, 6
    s_add_u32 s41, s41, s66
    s_add_u32 s41, s41, {FP}
    s_lshl_b32 s66, s3, 14
    v_add_u32 v21, s66, v3
    s_cmp_ge_u32 s2, 208
    s_cselect_b32 s66, 3, 1
    s_waitcnt lgkmcnt(0)
    s_barrier
    s_cmp_ge_u32 s3, s66
    s_cbranch_scc1 L_fin
    """)
    R = K0
    red_sum(21, R)
    tag(R)
    a(f"buffer_store_dwordx4 v[{R}:{R+3}], v20, s[24:27], s41 offen sc1")
    stamp("s3pub")
    a("s_branch L_fin")
    a(f"""
    L_final:
    s_cmp_ge_u32 s2, 36
    s_cbranch_scc1 L_epoch
    s_cmp_ge_u32 s3, 4
    s_cbranch_scc1 L_fin
    s_mul_i32 s66, s2, 57
    s_lshr_b32 s66, s66, 9
    s_mul_i32 s67, s66, 9
    s_sub_u32 s67, s2, s67
    s_mul_i32 s66, s66, 1152
    s_lshl_b32 s67, s67, 7
    s_add_u32 s66, s66, s67
    s_lshr_b32 s67, s3, 1
    s_lshl_b32 s67, s67, 6
    s_add_u32 s66, s66, s67
    s_and_b32 s67, s3, 1
    s_lshl_b32 s67, s67, 3
    s_add_u32 s66, s66, s67
    v_and_b32 v20, 3, v1
    v_lshlrev_b32 v21, 4, v20
    v_lshrrev_b32 v22, 4, v1
    v_lshl_add_u32 v21, v22, 1, v21
    buffer_load_ushort v19, v21, s[4:7], s66 offen
    v_and_b32 v23, 15, v1
    v_lshlrev_b32 v24, 6, v23
    v_lshl_add_u32 v24, v22, 4, v24
    v_and_b32 v25, 1, v1
    v_lshlrev_b32 v25, 6, v25
    v_lshl_add_u32 v25, v22, 4, v25
    s_lshl_b32 s67, s2, 2
    s_add_u32 s67, s67, s3
    s_lshl_b32 s67, s67, 12
    s_add_u32 s67, s67, {FP}
    v_cmp_gt_u32 s[60:61], 2, v23
    v_cmp_eq_u32 s[62:63], 1, v20
    v_cmp_eq_u32 s[44:45], 2, v20
    v_cmp_eq_u32 s[46:47], 3, v20
    s_mov_b32 s65, {spin}
    L_fchk:
    buffer_load_dwordx4 v[32:35], v24, s[24:27], s67 offen sc1
    buffer_load_dwordx4 v[36:39], v24, s[24:27], s67 offen offset:1024 sc1
    buffer_load_dwordx4 v[40:43], v25, s[24:27], s67 offen offset:2048 sc1
    s_waitcnt vmcnt(0)
    """)
    check(32, 26); check(36, 28, 52); check(40, 26, 52)
    a(f"""
    s_cbranch_vccz L_fok
    s_sub_u32 s65, s65, 1
    s_cbranch_scc0 L_fchk
    L_fok:
    """)
    stamp("fok")
    for r in range(4): a(f"v_cndmask_b32 v{40+r}, 0, v{40+r}, s[60:61]")
    for r in range(4): a(f"v_add_f32 v{36+r}, v{36+r}, v{40+r}")
    for m in ("row_ror:8", "row_ror:4", "row_ror:2", "row_ror:1"):
        for r in range(8): a(f"v_add_f32_dpp v{32+r}, v{32+r}, v{32+r} {m} row_mask:0xf bank_mask:0xf")
    a(f"""
    v_cndmask_b32 v32, v32, v33, s[62:63]
    v_cndmask_b32 v36, v36, v37, s[62:63]
    v_cndmask_b32 v32, v32, v34, s[44:45]
    v_cndmask_b32 v36, v36, v38, s[44:45]
    v_cndmask_b32 v32, v32, v35, s[46:47]
    v_cndmask_b32 v36, v36, v39, s[46:47]
    v_cvt_pk_bf16_f32 v32, v32, v36
    v_and_b32 v36, s50, v32
    v_lshlrev_b32 v32, 16, v32
    v_mul_f32 v33, {hex(f2u(-1.4426950408889634))}, v36
    v_exp_f32 v33, v33
    v_lshlrev_b32 v19, 16, v19
    v_add_f32 v33, 1.0, v33
    v_rcp_f32 v33, v33
    v_cmp_gt_u32 vcc, 4, v23
    v_mul_f32 v33, v33, v36
    v_cvt_pk_bf16_f32 v33, v33, v33
    v_and_b32 v33, s50, v33
    v_mul_f32 v32, v32, v33
    v_cvt_pk_bf16_f32 v32, v32, v32
    v_and_b32 v32, s50, v32
    v_add_f32 v32, v32, v19
    v_cvt_pk_bf16_f32 v32, v32, v32
    s_mov_b64 exec, vcc
    buffer_store_short v32, v21, s[28:31], s66 offen
    s_mov_b64 exec, -1
    s_branch L_fin
    L_epoch:
    s_cmp_lg_u32 s2, 45
    s_cbranch_scc1 L_fin
    s_cmp_lg_u32 s3, 5
    s_cbranch_scc1 L_fin
    v_mov_b32 v20, 0
    s_mov_b32 s65, {spin}
    L_echk:
    buffer_load_dword v21, v20, s[32:35], 0 offen sc1
    s_waitcnt vmcnt(0)
    v_cmp_ne_u32 vcc, 256, v21
    s_cbranch_vccz L_eok
    s_sub_u32 s65, s65, 1
    s_cbranch_scc0 L_echk
    L_eok:
    v_mov_b32 v21, s48
    s_mov_b64 exec, 1
    buffer_store_dword v21, v20, s[24:27], 0 offen sc1
    s_mov_b64 exec, -1
    L_fin:
    """)
    if span:
        a("s_waitcnt vmcnt(0)")
        a("s_memrealtime s[100:101]")
        a("s_waitcnt lgkmcnt(0)")
        a("s_not_b32 s98, s98")
        a("v_mov_b32 v20, 0"); a("v_mov_b32 v21, s100"); a("v_mov_b32 v22, s98")
        a("s_mov_b64 exec, 1")
        a("buffer_atomic_umax v21, v20, s[32:35], 0 offen offset:8 sc1")
        a("buffer_atomic_umax v22, v20, s[32:35], 0 offen offset:12 sc1")
    if diag:
        stamp("end")
        a("s_waitcnt lgkmcnt(0)")
        a("s_lshl_b32 s41, s2, 3"); a("s_add_u32 s41, s41, s3"); a("s_lshl_b32 s41, s41, 7"); a(f"s_add_u32 s41, s41, {TS_OFF}")
        a("v_mov_b32 v20, 0")
        for k in range(16):
            a(f"v_mov_b32 v22, s{70+2*k}"); a(f"v_mov_b32 v23, s{71+2*k}")
            a(f"buffer_store_dwordx2 v[22:23], v20, s[24:27], s41 offen offset:{k*8}")
    a("L_end:"); a("s_endpgm")
    a('.section .rodata,"a"'); a(".p2align 6"); a(f".amdhsa_kernel {NAME}_kernel")
    a("  .amdhsa_next_free_vgpr 256"); a("  .amdhsa_next_free_sgpr 102"); a("  .amdhsa_accum_offset 256")
    a("  .amdhsa_group_segment_fixed_size 0"); a("  .amdhsa_kernarg_size 96"); a("  .amdhsa_user_sgpr_count 2")
    a("  .amdhsa_user_sgpr_kernarg_segment_ptr 1"); a("  .amdhsa_system_sgpr_workgroup_id_x 1"); a(".end_amdhsa_kernel")
    txt = a.finalize()
    return txt, ts
if __name__ == "__main__":
    txt, _ = gen()
    open("k.s", "w").write(txt)
    txt, ts = gen(diag=True)
    open("kd.s", "w").write(txt)
    print(ts)
    open("kspan.s", "w").write(gen(span=True)[0])
    open("knont.s", "w").write(gen(span=True, ntw="", ntkv="")[0])
    open("kntkv.s", "w").write(gen(span=True, ntw="")[0])
```

```python
import sys, struct
from asmlib import Asm
NAME = "recurrent_scan__sliding_block_cached__geglu_ffn__decode"
def f2u(x): return struct.unpack("<I", struct.pack("<f", x))[0]

Y1 = 0x1000
OP = 0x40000
ST = 0x80000
FP = 0x90000
WS_USED = 0x120000
TS_OFF = 0x10000000
XSTR = 1168
XN = 0
QL = 4736
PL = QL + 4096
HB = PL + 4096
MX = HB + 2048
LS = MX + 64
OR = LS + 64
RED = OR + 8192
LDS_SIZE = RED + 49152
assert OR % 16 == 0 and RED % 16 == 0 and QL % 16 == 0

def gen(span=False, diag=False, NKA=6, spin=20000, ntw="nt", ntkv="nt"):
    a = Asm()
    hdr = open("cdna_kernels/" + NAME + ".s.ref").read().split("\n") if False else []
    a(f"; @launch grid=(256,1,1) block=(512,1,1) lds={LDS_SIZE}")
    a('.amdgcn_target "amdgcn-amd-amdhsa--gfx950"')
    a(".text"); a(f".globl {NAME}_kernel"); a(".p2align 8"); a(f".type {NAME}_kernel,@function"); a(f"{NAME}_kernel:")
    ts = []
    def stamp(name):
        if not diag: return
        s = 70 + 2 * len(ts); assert s + 1 <= 101
        ts.append(name); a(f"s_memrealtime s[{s}:{s+1}]")
    if diag:
        for s in range(70, 102): a(f"s_mov_b32 s{s}, 0")
    stamp("start")
    if span: a("s_memrealtime s[98:99]")
    K0, V0, W0, ACC = 64, 128, 192, 32
    a(f"""
    s_cmp_ge_u32 s2, 256
    s_cbranch_scc1 L_end
    s_load_dwordx2 s[4:5], s[0:1], 0
    s_load_dwordx2 s[8:9], s[0:1], 8
    s_load_dwordx2 s[24:25], s[0:1], 88
    s_mov_b32 s37, 8192
    s_mov_b32 s18, 4718592
    s_cmp_ge_u32 s2, 64
    s_cselect_b32 s36, 48, 24
    s_cselect_b32 s37, 9216, s37
    s_cselect_b32 s18, 5308416, s18
    s_cselect_b32 s38, 64, 0
    s_cmp_ge_u32 s2, 136
    s_cselect_b32 s36, 56, s36
    s_cselect_b32 s38, 136, s38
    s_load_dwordx2 s[16:17], s[0:1], s36
    v_lshrrev_b32 v20, 6, v0
    v_and_b32 v1, 63, v0
    s_mov_b32 s6, 4608
    v_readfirstlane_b32 s3, v20
    s_mov_b32 s7, 0x20000
    s_mov_b32 s10, 0x8000000
    s_mov_b32 s11, 0x20000
    s_mov_b32 s19, 0x20000
    s_mov_b32 s26, {0x20000000 if diag else WS_USED}
    s_mov_b32 s27, 0x20000
    """)
    a("""
    v_lshrrev_b32 v20, 4, v1
    v_bfe_u32 v21, v1, 3, 1
    v_lshl_add_u32 v21, v21, 2, v20
    v_and_b32 v22, 7, v1
    v_lshlrev_b32 v22, 4, v22
    v_mad_u32_u24 v5, v21, s37, v22
    s_lshl_b32 s40, s37, 3
    v_mad_u32_u24 v4, v21, s40, v22
    v_mul_u32_u24 v6, 4608, v21
    v_add_u32 v6, v6, v22
    v_lshlrev_b32 v3, 4, v1
    v_bfe_u32 v2, v1, 1, 3
    v_lshlrev_b32 v2, 8, v2
    v_lshl_add_u32 v2, v20, 5, v2
    v_and_b32 v22, 1, v1
    v_lshl_add_u32 v2, v22, 4, v2
    s_and_b32 s41, s3, 3
    s_mul_i32 s41, s41, 1152
    v_add_u32 v7, s41, v3
    v_mov_b32 v22, 0x100000
    v_cmp_gt_u32 vcc, 36, v1
    v_cndmask_b32 v7, v22, v7, vcc
    """)
    a("""
    s_sub_u32 s42, s2, s38
    s_lshl_b32 s42, s42, 7
    s_mul_i32 s44, s3, s40
    s_lshl_b32 s43, s37, 9
    s_add_u32 s43, s43, s44
    s_add_u32 s43, s43, s42
    s_lshl_b32 s44, s44, 3
    s_add_u32 s42, s42, s44
    """)
    a("""
    s_lshr_b32 s44, s2, 2
    s_lshl_b32 s44, s44, 21
    s_and_b32 s45, s2, 3
    s_lshl_b32 s45, s45, 17
    s_add_u32 s44, s44, s45
    s_lshl_b32 s45, s3, 14
    s_add_u32 s44, s44, s45
    s_add_u32 s44, s44, 0x180000
    s_add_u32 s45, s44, 4096
    s_add_u32 s46, s44, 8192
    s_add_u32 s47, s44, 12288
    s_cmp_ge_u32 s2, 208
    s_cselect_b32 s39, 32, 64
    s_waitcnt lgkmcnt(0)
    """)
    stamp("karg")
    def kload(G, ip):
        i = G * 2 + ip
        a(f"buffer_load_dwordx4 v[{K0+4*i}:{K0+4*i+3}], v2, s[8:11], s{44+(G>>1)} offen offset:{(G&1)*2048+ip*128} {ntkv}")
    def vload(t):
        a(f"buffer_load_dwordx4 v[{V0+4*t}:{V0+4*t+3}], v3, s[12:15], s{44+(t>>2)} offen offset:{(t&3)*1024} {ntkv}")
    def second_batch():
        a("""
        s_load_dwordx2 s[12:13], s[0:1], 16
        s_load_dwordx2 s[20:21], s[0:1], s39
        s_load_dwordx2 s[28:29], s[0:1], 72
        s_load_dwordx2 s[32:33], s[0:1], 80
        s_load_dword s48, s[24:25], 0
        """)
    a("s_setprio 3")
    a("s_cbranch_scc1 L_c_start")
    a(f"buffer_load_dwordx4 v[{V0}:{V0+3}], v7, s[4:7], 0 offen")
    a(f"buffer_load_dwordx4 v[{V0+4}:{V0+7}], v7, s[4:7], 0 offen offset:576")
    for j in range(8):
        a(f"buffer_load_dwordx4 v[{W0+4*j}:{W0+4*j+3}], v4, s[16:19], s42 offen {ntw}")
        if j < 7: a("s_add_u32 s42, s42, s37")
        if j == 1: second_batch()
    a(f"buffer_load_dwordx4 v[{W0+32}:{W0+35}], v5, s[16:19], s43 offen {ntw}")
    a("s_setprio 0")
    stamp("s1issued")
    X = V0; F = V0 + 8
    a("s_waitcnt vmcnt(9)")
    a("s_mov_b32 s50, 0xffff0000")
    for i in range(8):
        a(f"v_lshlrev_b32 v{F+2*i}, 16, v{X+i}")
        a(f"v_and_b32 v{F+2*i+1}, s50, v{X+i}")
    T = V0 + 24
    a(f"v_pk_add_f32 v[{T}:{T+1}], v[{F}:{F+1}], v[{F+2}:{F+3}]")
    for i in range(2, 8): a(f"v_pk_add_f32 v[{T}:{T+1}], v[{T}:{T+1}], v[{F+2*i}:{F+2*i+1}]")
    a(f"v_add_f32 v{T}, v{T}, v{T+1}")
    def wave_red(op, rs):
        for m in ("row_ror:8 row_mask:0xf", "row_ror:4 row_mask:0xf", "row_ror:2 row_mask:0xf", "row_ror:1 row_mask:0xf",
                  "row_bcast:15 row_mask:0xa", "row_bcast:31 row_mask:0xc"):
            for r in rs: a(f"{op}_dpp v{r}, v{r}, v{r} {m} bank_mask:0xf")
    wave_red("v_add_f32", [T])
    a(f"v_mul_f32 v{T}, {hex(f2u(1/576))}, v{T}")
    a(f"v_readlane_b32 s52, v{T}, 63")
    a("s_mov_b32 s53, s52")
    D = V0 + 26
    for i in range(8):
        a(f"v_pk_add_f32 v[{D}:{D+1}], v[{F+2*i}:{F+2*i+1}], s[52:53] neg_lo:[0,1] neg_hi:[0,1]")
        if i == 0: a(f"v_pk_mul_f32 v[{T}:{T+1}], v[{D}:{D+1}], v[{D}:{D+1}]")
        else: a(f"v_pk_fma_f32 v[{T}:{T+1}], v[{D}:{D+1}], v[{D}:{D+1}], v[{T}:{T+1}]")
    a(f"v_add_f32 v{T}, v{T}, v{T+1}")
    a(f"v_cndmask_b32 v{T}, 0, v{T}, vcc")
    wave_red("v_add_f32", [T])
    a(f"v_mul_f32 v{T}, {hex(f2u(1/576))}, v{T}")
    a(f"v_readlane_b32 s54, v{T}, 63")
    a(f"v_mov_b32 v{T}, s52")
    a(f"v_mov_b32 v{T+1}, s54")
    a(f"v_cvt_pk_bf16_f32 v{T}, v{T}, v{T+1}")
    a(f"v_and_b32 v{T+1}, s50, v{T}")
    a(f"v_lshlrev_b32 v{D}, 16, v{T}")
    a(f"v_mov_b32 v{D+1}, v{D}")
    a(f"v_add_f32 v{T+1}, {hex(f2u(1e-5))}, v{T+1}")
    a(f"v_cvt_pk_bf16_f32 v{T+1}, v{T+1}, v{T+1}")
    a(f"v_and_b32 v{T+1}, s50, v{T+1}")
    a(f"v_sqrt_f32 v{T+1}, v{T+1}")
    a(f"v_cvt_pk_bf16_f32 v{T+1}, v{T+1}, v{T+1}")
    a(f"v_and_b32 v{T+1}, s50, v{T+1}")
    a(f"v_rcp_f32 v{T}, v{T+1}")
    a(f"v_mov_b32 v{T+1}, v{T}")
    for i in range(8):
        a(f"v_pk_add_f32 v[{F+2*i}:{F+2*i+1}], v[{F+2*i}:{F+2*i+1}], v[{D}:{D+1}] neg_lo:[0,1] neg_hi:[0,1]")
    for i in range(8): a(f"v_cvt_pk_bf16_f32 v{X+i}, v{F+2*i}, v{F+2*i+1}")
    for i in range(8):
        a(f"v_lshlrev_b32 v{F+2*i}, 16, v{X+i}")
        a(f"v_and_b32 v{F+2*i+1}, s50, v{X+i}")
    for i in range(8): a(f"v_pk_mul_f32 v[{F+2*i}:{F+2*i+1}], v[{F+2*i}:{F+2*i+1}], v[{T}:{T+1}]")
    for i in range(8): a(f"v_cvt_pk_bf16_f32 v{X+i}, v{F+2*i}, v{F+2*i+1}")
    a(f"""
    s_and_b32 s41, s3, 3
    s_mul_i32 s41, s41, {XSTR}
    v_add_u32 v20, s41, v3
    s_mov_b32 exec_hi, 0xf
    ds_write_b128 v20, v[{X}:{X+3}] offset:{XN}
    ds_write_b128 v20, v[{X+4}:{X+7}] offset:{XN+576}
    s_mov_b64 exec, -1
    s_setprio 2
    """)
    stamp("ln")
    for i in range(NKA): kload(i >> 1, i & 1)
    a("s_setprio 0")
    a(f"""
    v_and_b32 v20, 3, v1
    v_mul_u32_u24 v20, {XSTR}, v20
    v_bfe_u32 v21, v1, 2, 1
    v_lshrrev_b32 v22, 4, v1
    v_lshl_add_u32 v21, v21, 2, v22
    s_lshl_b32 s41, s3, 7
    v_lshl_add_u32 v22, v21, 4, v20
    v_add_u32 v22, s41, v22
    s_lshl_b32 s41, s3, 4
    v_lshl_add_u32 v23, v21, 1, v20
    v_add_u32 v23, s41, v23
    s_waitcnt lgkmcnt(0)
    s_barrier
    ds_read_b128 v[24:27], v22 offset:{XN}
    ds_read_u16 v28, v23 offset:{XN+1024}
    """)
    common_setup_done = False
    def common_setup():
        a(f"""
        s_add_u32 s48, s48, 0x01010101
        s_mov_b32 s50, 0xffff0000
        s_mov_b32 s51, 0xffffff00
        s_mov_b32 s55, 0x05040100
        s_mov_b32 s56, 0x07060302
        s_mov_b32 s57, 0x0c0c0400
        s_mov_b32 s58, 0x04000c0c
        s_mov_b32 s14, 0x8000000
        s_mov_b32 s15, 0x20000
        s_mov_b32 s23, 0x20000
        s_mov_b32 s30, 4608
        s_mov_b32 s31, 0x20000
        s_mov_b32 s34, 256
        s_mov_b32 s35, 0x20000
        s_and_b32 s41, s48, 0xff
        v_mov_b32 v8, s41
        s_bfe_u32 s41, s48, 0x80008
        v_mov_b32 v9, s41
        s_bfe_u32 s41, s48, 0x80010
        v_mov_b32 v10, s41
        s_lshr_b32 s41, s48, 24
        v_mov_b32 v11, s41
        """)
        a(f"""
        v_lshrrev_b32 v18, 5, v1
        v_lshlrev_b32 v18, 10, v18
        v_bfe_u32 v19, v1, 4, 1
        v_lshl_add_u32 v18, v19, 6, v18
        v_and_b32 v19, 3, v1
        v_lshl_add_u32 v18, v19, 4, v18
        s_lshl_b32 s41, s3, 11
        s_add_u32 s41, s41, {RED}
        v_add_u32 v18, s41, v18
        """)
        common_setup.n += 1
    common_setup.n = 0
    common_setup()
    B2 = V0 + 8
    a(f"""
    s_waitcnt lgkmcnt(0)
    v_mov_b32 v{B2}, v28
    v_mov_b32 v{B2+1}, 0
    v_lshlrev_b32 v{B2+2}, 16, v28
    v_mov_b32 v{B2+3}, 0
    v_mov_b32 v{B2+4}, 0
    v_mov_b32 v{B2+5}, v28
    v_mov_b32 v{B2+6}, 0
    v_lshlrev_b32 v{B2+7}, 16, v28
    s_waitcnt vmcnt({NKA})
    """)
    stamp("s1data")
    TQ = V0 + 16
    for e in range(8):
        i = e >> 1; sel = 55 + (e & 1); t = TQ + 4 * e
        for jj in range(4):
            a(f"v_perm_b32 v{t+jj}, v{W0+4*(2*jj+1)+i}, v{W0+4*(2*jj)+i}, s{sel}")
        if e >= 1:
            tp = TQ + 4 * (e - 1)
            a(f"v_mfma_f32_16x16x32_bf16 v[{ACC+4*(e-1)}:{ACC+4*(e-1)+3}], v[{tp}:{tp+3}], v[24:27], 0")
    tp = TQ + 28
    a(f"v_mfma_f32_16x16x32_bf16 v[{ACC+28}:{ACC+31}], v[{tp}:{tp+3}], v[24:27], 0")
    for e in range(8):
        p = W0 + 32 + 2 * (e >> 2); bb = B2 + 2 * (e & 3)
        a(f"v_mfma_f32_16x16x16_bf16 v[{ACC+4*e}:{ACC+4*e+3}], v[{p}:{p+1}], v[{bb}:{bb+1}], v[{ACC+4*e}:{ACC+4*e+3}]")
    VALID = "0x00f000f0000f000f"
    def red_write(acc, blk):
        for e in range(8): a(f"ds_write_b128 v18, v[{acc+4*e}:{acc+4*e+3}] offset:{blk*16384+e*128}")
    a(f"s_mov_b32 exec_lo, 0x000f000f"); a("s_mov_b32 exec_hi, 0x00f000f0")
    red_write(ACC, 0)
    a("s_mov_b64 exec, -1")
    a("s_waitcnt lgkmcnt(0)"); a("s_barrier")
    def red_sum(vaddr, R):
        for p in range(16): a(f"ds_read_b128 v[{R+4*p}:{R+4*p+3}], v{vaddr} offset:{RED+p*1024}")
        n = 16
        a("s_waitcnt lgkmcnt(8)")
        for p in range(1, 8):
            a(f"v_pk_add_f32 v[{R}:{R+1}], v[{R}:{R+1}], v[{R+4*p}:{R+4*p+1}]")
            a(f"v_pk_add_f32 v[{R+2}:{R+3}], v[{R+2}:{R+3}], v[{R+4*p+2}:{R+4*p+3}]")
        a("s_waitcnt lgkmcnt(0)")
        for p in range(8, 16):
            a(f"v_pk_add_f32 v[{R}:{R+1}], v[{R}:{R+1}], v[{R+4*p}:{R+4*p+1}]")
            a(f"v_pk_add_f32 v[{R+2}:{R+3}], v[{R+2}:{R+3}], v[{R+4*p+2}:{R+4*p+3}]")
    def tag(R):
        for i in range(4): a(f"v_and_or_b32 v{R+i}, v{R+i}, s51, v{8+i}")
    def check(R, t0, acc=None):
        a(f"v_perm_b32 v{t0}, v{R+1}, v{R}, s57")
        a(f"v_perm_b32 v{t0+1}, v{R+3}, v{R+2}, s58")
        a(f"v_or_b32 v{t0}, v{t0}, v{t0+1}")
        if acc is None: a(f"v_cmp_ne_u32 vcc, s48, v{t0}")
        else:
            a(f"v_cmp_ne_u32 s[{acc}:{acc+1}], s48, v{t0}")
            a(f"s_or_b64 vcc, vcc, s[{acc}:{acc+1}]")
    a("s_cmp_lg_u32 s3, 0"); a("s_cbranch_scc1 L_s1done")
    a("s_setprio 3")
    R = V0
    red_sum(3, R)
    a(f"""
    v_cvt_pk_bf16_f32 v{R+4}, v{R}, v{R+1}
    v_cvt_pk_bf16_f32 v{R+5}, v{R+2}, v{R+3}
    v_lshl_or_b32 v{R}, v{R+4}, 16, v8
    v_and_or_b32 v{R+1}, v{R+4}, s50, v9
    v_lshl_or_b32 v{R+2}, v{R+5}, 16, v10
    v_and_or_b32 v{R+3}, v{R+5}, s50, v11
    v_and_b32 v20, 3, v1
    v_lshlrev_b32 v20, 8, v20
    v_bfe_u32 v21, v1, 2, 1
    v_lshl_add_u32 v20, v21, 7, v20
    v_lshrrev_b32 v21, 3, v1
    v_lshl_add_u32 v20, v21, 4, v20
    s_lshl_b32 s41, s2, 10
    s_add_u32 s41, s41, {Y1}
    buffer_store_dwordx4 v[{R}:{R+3}], v20, s[24:27], s41 offen sc1
    """)
    stamp("s1pub")
    a("L_s1done:")
    a("s_setprio 2")
    a("s_branch L_kb")
    a("L_c_start:")
    a("s_setprio 2")
    kload(0, 0); kload(0, 1)
    second_batch()
    for i in range(2, NKA): kload(i >> 1, i & 1)
    a("s_waitcnt lgkmcnt(0)")
    common_setup()
    a("L_kb:")
    for i in range(NKA, 16): kload(i >> 1, i & 1)
    a("s_setprio 1")
    for t in range(8): vload(t)
    a(f"""
    s_cmp_ge_u32 s2, 208
    s_cbranch_scc1 L_dec_c
    s_sub_u32 s41, s2, 46
    s_mul_i32 s62, s41, 57
    s_lshr_b32 s62, s62, 9
    s_mul_i32 s60, s62, 9
    s_sub_u32 s60, s41, s60
    s_add_u32 s59, s62, 16
    s_cmp_ge_u32 s2, 46
    s_cselect_b32 s22, 5308416, 0
    s_cselect_b32 s62, s62, 0
    s_branch L_dec_j
    L_dec_c:
    s_sub_u32 s41, s2, 208
    s_mul_i32 s62, s41, 43
    s_lshr_b32 s62, s62, 7
    s_mul_i32 s60, s62, 3
    s_sub_u32 s60, s41, s60
    s_mul_i32 s60, s60, 3
    s_mov_b32 s59, s62
    s_mov_b32 s22, 4718592
    L_dec_j:
    s_lshl_b32 s61, s62, 3
    s_add_u32 s61, s61, s3
    s_mul_i32 s61, s61, {32*1152}
    s_lshl_b32 s41, s60, 7
    s_add_u32 s61, s61, s41
    """)
    a(f"""
    v_lshrrev_b32 v16, 4, v1
    v_lshlrev_b32 v16, 10, v16
    v_and_b32 v20, 15, v1
    v_lshl_add_u32 v16, v20, 4, v16
    s_bfe_u32 s41, s2, 0x40002
    s_lshl_b32 s41, s41, 12
    s_lshr_b32 s63, s2, 6
    s_lshl_b32 s63, s63, 8
    s_add_u32 s63, s63, s41
    s_add_u32 s63, s63, {Y1}
    v_lshrrev_b32 v17, 5, v1
    v_mul_u32_u24 v17, {72*1024}, v17
    v_bfe_u32 v20, v1, 3, 2
    v_lshl_add_u32 v17, v20, 8, v17
    v_and_b32 v20, 7, v1
    v_lshl_add_u32 v17, v20, 4, v17
    s_lshl_b32 s64, s62, 12
    s_lshl_b32 s41, s3, 9
    s_and_b32 s41, s41, 0xc00
    s_add_u32 s64, s64, s41
    s_and_b32 s41, s3, 1
    s_lshl_b32 s41, s41, 7
    s_add_u32 s64, s64, s41
    s_add_u32 s64, s64, {Y1 + 64*1024}
    buffer_load_dwordx4 v[244:247], v16, s[24:27], s63 offen sc1
    buffer_load_dwordx4 v[248:251], v17, s[24:27], s64 offen sc1
    """)
    for t in range(8, 16): vload(t)
    a("s_setprio 0")
    stamp("vissued")
    a(f"""
    v_lshrrev_b32 v20, 3, v1
    v_lshlrev_b32 v20, 6, v20
    v_and_b32 v21, 7, v1
    v_lshl_add_u32 v20, v21, 1, v20
    s_lshl_b32 s41, s3, 9
    v_add_u32 v20, s41, v20
    v_and_b32 v21, 1, v1
    v_lshlrev_b32 v21, 8, v21
    v_lshrrev_b32 v22, 4, v1
    v_lshl_add_u32 v21, v22, 5, v21
    v_bfe_u32 v22, v1, 1, 1
    v_lshl_add_u32 v21, v22, 4, v21
    v_add_u32 v21, s41, v21
    s_mov_b32 s65, {spin}
    s_waitcnt vmcnt(8)
    L_qchk:
    """)
    check(244, 22)
    a(f"""
    s_cbranch_vccz L_qok
    s_sub_u32 s65, s65, 1
    s_cbranch_scc1 L_qok
    buffer_load_dwordx4 v[244:247], v16, s[24:27], s63 offen sc1
    s_waitcnt vmcnt(0)
    s_branch L_qchk
    L_qok:
    """)
    stamp("qok")
    for r in range(4): a(f"ds_write_b16_d16_hi v20, v{244+r} offset:{QL+16*r}")
    a(f"ds_read_b128 v[24:27], v21 offset:{QL}")
    a(f"ds_read_b128 v[28:31], v21 offset:{QL+128}")
    a(f"""
    s_sub_u32 s41, s2, 46
    s_cmp_ge_u32 s41, 162
    s_cbranch_scc1 L_noh
    L_guchk:
    """)
    check(248, 22)
    a(f"""
    s_cbranch_vccz L_guok
    s_sub_u32 s65, s65, 1
    s_cbranch_scc1 L_guok
    buffer_load_dwordx4 v[248:251], v17, s[24:27], s64 offen sc1
    s_waitcnt vmcnt(0)
    s_branch L_guchk
    L_guok:
    v_permlane32_swap_b32 v248, v250
    v_permlane32_swap_b32 v249, v251
    s_mov_b32 s41, {hex(f2u(2*0.7978845608028654*1.4426950408889634*0.044715))}
    v_mov_b32 v252, {hex(f2u(2*0.7978845608028654*1.4426950408889634))}
    """)
    for r in range(4): a(f"v_and_b32 v{248+r}, s50, v{248+r}")
    for r in range(2): a(f"v_mul_f32 v{244+r}, v{248+r}, v{248+r}")
    for r in range(2): a(f"v_fma_f32 v{244+r}, v{244+r}, s41, v252")
    for r in range(2): a(f"v_mul_f32 v{244+r}, v{244+r}, v{248+r}")
    for r in range(2): a(f"v_exp_f32 v{244+r}, -v{244+r}")
    for r in range(2): a(f"v_add_f32 v{244+r}, 1.0, v{244+r}")
    for r in range(2): a(f"v_rcp_f32 v{244+r}, v{244+r}")
    for r in range(2): a(f"v_mul_f32 v{244+r}, v{244+r}, v{248+r}")
    a(f"""
    v_cvt_pk_bf16_f32 v244, v244, v245
    v_and_b32 v245, s50, v244
    v_lshlrev_b32 v244, 16, v244
    v_mul_f32 v244, v244, v250
    v_mul_f32 v245, v245, v251
    v_cvt_pk_bf16_f32 v244, v244, v245
    v_bfe_u32 v22, v1, 3, 2
    v_lshlrev_b32 v22, 6, v22
    v_lshrrev_b32 v23, 5, v1
    v_lshl_add_u32 v22, v23, 5, v22
    v_and_b32 v23, 7, v1
    v_lshl_add_u32 v22, v23, 1, v22
    s_lshl_b32 s41, s3, 8
    v_add_u32 v22, s41, v22
    ds_write_b16 v22, v244 offset:{HB}
    ds_write_b16_d16_hi v22, v244 offset:{HB+16}
    L_noh:
    s_mov_b32 s66, 0x000f000f
    s_mov_b32 s67, 0x000f000f
    s_waitcnt lgkmcnt(0)
    """)
    for t in range(4):
        for ip in range(2):
            for r in range(4):
                a(f"v_cndmask_b32 v{ACC+(t*2+ip)*4+r}, 0, v{24+4*ip+r}, s[66:67]")
        if t < 3: a("s_lshl_b64 s[66:67], s[66:67], 4")
    for G4 in range(4):
        for ip in range(2):
            for par in range(2):
                G = par * 4 + G4; i = G * 2 + ip
                A = ACC + (G4 * 2 + ip) * 4; Dd = 20 + 4 * par
                C = "0" if (G4 == 0 and ip == 0) else f"v[{Dd}:{Dd+3}]"
                a(f"v_mfma_f32_16x16x32_bf16 v[{Dd}:{Dd+3}], v[{A}:{A+3}], v[{K0+4*i}:{K0+4*i+3}], {C}")
    a(f"""
    s_mov_b32 s66, 0xaaaaaaaa
    s_mov_b32 s67, 0xaaaaaaaa
    s_mov_b32 s41, {hex(f2u(128 ** -0.5))}
    v_add_f32_dpp v20, v22, v20 quad_perm:[1,0,3,2] row_mask:0xf bank_mask:0xf
    v_add_f32_dpp v21, v23, v21 quad_perm:[1,0,3,2] row_mask:0xf bank_mask:0xf
    v_add_f32_dpp v26, v24, v26 quad_perm:[1,0,3,2] row_mask:0xf bank_mask:0xf
    v_add_f32_dpp v27, v25, v27 quad_perm:[1,0,3,2] row_mask:0xf bank_mask:0xf
    v_cndmask_b32 v20, v20, v26, s[66:67]
    v_cndmask_b32 v21, v21, v27, s[66:67]
    v_cvt_pk_bf16_f32 v22, v20, v21
    v_lshlrev_b32 v20, 16, v22
    v_and_b32 v21, s50, v22
    v_mul_f32 v20, s41, v20
    v_mul_f32 v21, s41, v21
    v_cvt_pk_bf16_f32 v22, v20, v21
    s_mov_b32 s41, {hex(f2u(1.4426950408889634))}
    v_lshlrev_b32 v20, 16, v22
    v_and_b32 v21, s50, v22
    v_mul_f32 v20, s41, v20
    v_mul_f32 v21, s41, v21
    v_mov_b32 v22, v20
    v_mov_b32 v23, v21
    """)
    wave_red("v_max_f32", [22, 23])
    a(f"""
    s_lshl_b32 s41, s3, 3
    v_mov_b32 v24, s41
    s_mov_b32 exec_lo, 0
    s_mov_b32 exec_hi, 0x80000000
    ds_write_b64 v24, v[22:23] offset:{MX}
    s_mov_b64 exec, -1
    v_mov_b32 v24, 0
    s_waitcnt lgkmcnt(0)
    s_barrier
    ds_read_b128 v[32:35], v24 offset:{MX}
    ds_read_b128 v[36:39], v24 offset:{MX+16}
    ds_read_b128 v[40:43], v24 offset:{MX+32}
    ds_read_b128 v[44:47], v24 offset:{MX+48}
    """)
    stamp("qk")
    def s3load(blk):
        base = (W0 + 36) if blk == 0 else (W0 + 16 * (blk - 1))
        for j in range(4):
            a(f"buffer_load_dwordx4 v[{base+4*j}:{base+4*j+3}], v6, s[20:23], s61 offen offset:{j*1152+blk*128} {ntw}")
        return base
    s3load(0)
    a(f"""
    v_bfe_u32 v25, v1, 1, 2
    v_lshlrev_b32 v25, 6, v25
    v_and_b32 v26, 1, v1
    v_lshl_add_u32 v25, v26, 5, v25
    v_lshrrev_b32 v26, 4, v1
    v_lshl_add_u32 v25, v26, 3, v25
    v_bfe_u32 v27, v1, 3, 1
    v_lshl_add_u32 v25, v27, 2, v25
    s_lshl_b32 s41, s3, 9
    v_add_u32 v25, s41, v25
    v_lshl_add_u32 v26, v27, 2, v26
    v_lshlrev_b32 v26, 6, v26
    v_add_u32 v26, s41, v26
    v_and_b32 v27, 1, v1
    v_lshlrev_b32 v27, 4, v27
    v_mov_b32 v28, 0xffff
    v_lshlrev_b32 v27, v27, v28
    v_bfe_u32 v28, v1, 1, 2
    """)
    for i in range(4):
        a(f"v_cmp_eq_u32 vcc, {i}, v28")
        a(f"v_cndmask_b32 v{12+i}, 0, v27, vcc")
    a(f"""
    s_waitcnt lgkmcnt(0)
    v_max3_f32 v22, v32, v34, v36
    v_max3_f32 v23, v33, v35, v37
    v_max3_f32 v22, v22, v38, v40
    v_max3_f32 v23, v23, v39, v41
    v_max3_f32 v22, v22, v42, v44
    v_max3_f32 v23, v23, v43, v45
    v_max_f32 v22, v22, v46
    v_max_f32 v23, v23, v47
    v_and_b32 v30, s51, v22
    v_and_b32 v31, s51, v23
    v_sub_f32 v20, v20, v30
    v_sub_f32 v21, v21, v31
    v_exp_f32 v20, v20
    v_exp_f32 v21, v21
    v_cvt_pk_bf16_f32 v22, v20, v20
    v_cvt_pk_bf16_f32 v23, v21, v21
    ds_write_b32 v25, v22 offset:{PL}
    ds_write_b32 v25, v23 offset:{PL+256}
    ds_read_b128 v[32:35], v26 offset:{PL}
    ds_read_b128 v[36:39], v26 offset:{PL+16}
    ds_read_b128 v[40:43], v26 offset:{PL+32}
    ds_read_b128 v[44:47], v26 offset:{PL+48}
    """)
    wave_red("v_add_f32", [20, 21])
    a(f"""
    s_lshl_b32 s41, s3, 2
    v_mov_b32 v24, s41
    s_mov_b32 exec_lo, 0
    s_mov_b32 exec_hi, 0x80000000
    ds_write_b32 v24, v20 offset:{LS}
    ds_write_b32 v24, v21 offset:{LS+32}
    s_mov_b64 exec, -1
    s_waitcnt lgkmcnt(0)
    """)
    def bbuild(t):
        b = 48 + 4 * (t % 3)
        for i in range(4): a(f"v_and_b32 v{b+i}, v{12+i}, v{32+t}")
    bbuild(0)
    for t in range(16):
        if t + 1 < 16: bbuild(t + 1)
        if t >= 8: a(f"s_waitcnt vmcnt({15-t+4})")
        b = 48 + 4 * (t % 3)
        C = "0" if t == 0 else "v[60:63]"
        a(f"v_mfma_f32_16x16x32_bf16 v[60:63], v[{V0+4*t}:{V0+4*t+3}], v[{b}:{b+3}], {C}")
    stamp("pv")
    a("s_cmp_lt_u32 s2, 208"); a("s_cbranch_scc1 L_nos3bc")
    s3load(1); s3load(2)
    a("L_nos3bc:")
    a(f"""
    s_lshl_b32 s41, s3, 10
    v_add_u32 v24, s41, v3
    s_nop 4
    ds_write_b128 v24, v[60:63] offset:{OR}
    s_waitcnt lgkmcnt(0)
    s_barrier
    s_lshr_b32 s66, s2, 6
    s_bfe_u32 s67, s2, 0x40002
    s_lshl_b32 s67, s67, 2
    s_add_u32 s66, s66, s67
    s_and_b32 s67, s2, 3
    s_cmp_lg_u32 s3, 6
    s_cbranch_scc1 L_noopub
    s_setprio 3
    """)
    R = V0
    for p in range(8): a(f"ds_read_b128 v[{R+4*p}:{R+4*p+3}], v3 offset:{OR+p*1024}")
    a(f"""
    v_bfe_u32 v24, v1, 3, 1
    v_lshlrev_b32 v24, 11, v24
    v_lshrrev_b32 v25, 4, v1
    v_lshl_add_u32 v24, v25, 7, v24
    v_and_b32 v25, 7, v1
    v_lshl_add_u32 v24, v25, 4, v24
    s_lshl_b32 s41, s66, 12
    s_lshl_b32 s68, s67, 9
    s_add_u32 s41, s41, s68
    s_add_u32 s41, s41, {OP}
    s_waitcnt lgkmcnt(4)
    """)
    for p in range(1, 8):
        if p == 4: a("s_waitcnt lgkmcnt(0)")
        a(f"v_pk_add_f32 v[{R}:{R+1}], v[{R}:{R+1}], v[{R+4*p}:{R+4*p+1}]")
        a(f"v_pk_add_f32 v[{R+2}:{R+3}], v[{R+2}:{R+3}], v[{R+4*p+2}:{R+4*p+3}]")
    tag(R)
    a(f"buffer_store_dwordx4 v[{R}:{R+3}], v24, s[24:27], s41 offen sc1")
    stamp("opub")
    a(f"""
    s_setprio 0
    s_waitcnt vmcnt(1)
    s_branch L_s3go
    L_noopub:
    s_cmp_lg_u32 s3, 7
    s_cbranch_scc1 L_nospub
    s_setprio 3
    v_and_b32 v24, 1, v1
    v_lshlrev_b32 v25, 5, v24
    ds_read_b128 v[{R}:{R+3}], v25 offset:{LS}
    ds_read_b128 v[{R+4}:{R+7}], v25 offset:{LS+16}
    v_cmp_eq_u32 vcc, 1, v24
    v_cndmask_b32 v{R+8}, v30, v31, vcc
    v_lshlrev_b32 v24, 4, v24
    s_lshl_b32 s41, s66, 7
    s_lshl_b32 s68, s67, 5
    s_add_u32 s41, s41, s68
    s_add_u32 s41, s41, {ST}
    s_waitcnt lgkmcnt(0)
    v_pk_add_f32 v[{R}:{R+1}], v[{R}:{R+1}], v[{R+2}:{R+3}]
    v_pk_add_f32 v[{R+4}:{R+5}], v[{R+4}:{R+5}], v[{R+6}:{R+7}]
    v_pk_add_f32 v[{R}:{R+1}], v[{R}:{R+1}], v[{R+4}:{R+5}]
    v_add_f32 v{R+9}, v{R}, v{R+1}
    v_mov_b32 v{R+10}, v{R+8}
    v_mov_b32 v{R+11}, v{R+9}
    """)
    tag(R + 8)
    a(f"""
    s_mov_b64 exec, 3
    buffer_store_dwordx4 v[{R+8}:{R+11}], v24, s[24:27], s41 offen sc1
    s_mov_b64 exec, -1
    s_setprio 0
    s_waitcnt vmcnt(1)
    s_branch L_s3go
    L_nospub:
    s_waitcnt vmcnt(0)
    L_s3go:
    s_cmp_lt_u32 s2, 46
    s_cbranch_scc1 L_final
    """)
    stamp("s3data")
    a(f"""
    v_and_b32 v19, 3, v1
    v_lshlrev_b32 v19, 6, v19
    v_bfe_u32 v20, v1, 2, 1
    v_lshl_add_u32 v19, v20, 5, v19
    v_lshrrev_b32 v20, 4, v1
    v_lshl_add_u32 v19, v20, 3, v19
    s_lshl_b32 s41, s3, 8
    v_add_u32 v19, s41, v19
    """)
    def transp(src, dst):
        for e in range(8):
            i = e >> 1; sel = 55 + (e & 1)
            for jj in range(2):
                a(f"v_perm_b32 v{dst+2*e+jj}, v{src+4*(2*jj+1)+i}, v{src+4*(2*jj)+i}, s{sel}")
    transp(W0 + 36, K0)
    a("s_cmp_lt_u32 s2, 208"); a("s_cbranch_scc1 L_mm")
    transp(W0, K0 + 16); transp(W0 + 16, K0 + 32)
    a(f"""
    v_and_b32 v20, 3, v1
    v_lshlrev_b32 v21, 9, v20
    v_bfe_u32 v22, v1, 2, 3
    v_lshl_add_u32 v21, v22, 4, v21
    v_lshrrev_b32 v23, 5, v1
    v_lshl_add_u32 v21, v23, 12, v21
    v_lshlrev_b32 v20, 5, v20
    v_lshl_add_u32 v20, v23, 7, v20
    s_lshl_b32 s66, s62, 14
    s_lshr_b32 s41, s3, 2
    s_lshl_b32 s67, s41, 11
    s_add_u32 s66, s66, s67
    s_and_b32 s67, s3, 3
    s_lshl_b32 s67, s67, 7
    s_add_u32 s66, s66, s67
    s_add_u32 s66, s66, {OP}
    s_add_u32 s68, s66, 8192
    s_lshl_b32 s67, s62, 9
    s_lshl_b32 s41, s41, 4
    s_add_u32 s67, s67, s41
    s_add_u32 s67, s67, {ST}
    v_lshlrev_b32 v22, 1, v22
    v_lshl_add_u32 v22, v23, 6, v22
    s_lshl_b32 s41, s3, 8
    v_add_u32 v22, s41, v22
    s_mov_b32 s65, {spin}
    L_ochk:
    buffer_load_dwordx4 v[32:35], v21, s[24:27], s66 offen sc1
    buffer_load_dwordx4 v[36:39], v21, s[24:27], s68 offen sc1
    buffer_load_dwordx4 v[40:43], v20, s[24:27], s67 offen sc1
    buffer_load_dwordx4 v[44:47], v20, s[24:27], s67 offen offset:256 sc1
    s_waitcnt vmcnt(0)
    """)
    check(32, 24); check(36, 26, 52); check(40, 24, 52); check(44, 26, 52)
    a(f"""
    s_cbranch_vccz L_ook
    s_sub_u32 s65, s65, 1
    s_cbranch_scc0 L_ochk
    L_ook:
    """)
    stamp("ook")
    a("v_and_b32 v40, s51, v40"); a("v_and_b32 v44, s51, v44")
    for q in ("[1,0,3,2]", "[2,3,0,1]"):
        src = (40, 44) if q == "[1,0,3,2]" else (42, 46)
        a(f"v_max_f32_dpp v42, v{src[0]}, v{src[0]} quad_perm:{q} row_mask:0xf bank_mask:0xf")
        a(f"v_max_f32_dpp v46, v{src[1]}, v{src[1]} quad_perm:{q} row_mask:0xf bank_mask:0xf")
    a("""
    v_sub_f32 v40, v40, v42
    v_sub_f32 v44, v44, v46
    v_exp_f32 v40, v40
    v_exp_f32 v44, v44
    v_mul_f32 v41, v41, v40
    v_mul_f32 v45, v45, v44
    v_add_f32_dpp v41, v41, v41 quad_perm:[1,0,3,2] row_mask:0xf bank_mask:0xf
    v_add_f32_dpp v45, v45, v45 quad_perm:[1,0,3,2] row_mask:0xf bank_mask:0xf
    v_add_f32_dpp v41, v41, v41 quad_perm:[2,3,0,1] row_mask:0xf bank_mask:0xf
    v_add_f32_dpp v45, v45, v45 quad_perm:[2,3,0,1] row_mask:0xf bank_mask:0xf
    v_rcp_f32 v41, v41
    v_rcp_f32 v45, v45
    v_mul_f32 v40, v40, v41
    v_mul_f32 v44, v44, v45
    """)
    for r in range(4): a(f"v_mul_f32 v{32+r}, v{32+r}, v40")
    for r in range(4): a(f"v_mul_f32 v{36+r}, v{36+r}, v44")
    for q in ("[1,0,3,2]", "[2,3,0,1]"):
        for r in range(8): a(f"v_add_f32_dpp v{32+r}, v{32+r}, v{32+r} quad_perm:{q} row_mask:0xf bank_mask:0xf")
    for i in range(2):
        for rp in range(2):
            a(f"v_cvt_pk_bf16_f32 v{40+2*i+rp}, v{32+4*i+2*rp}, v{32+4*i+2*rp+1}")
    for i in range(2):
        for rp in range(2):
            a(f"ds_write_b16 v22, v{40+2*i+rp} offset:{HB+i*128+rp*32}")
            a(f"ds_write_b16_d16_hi v22, v{40+2*i+rp} offset:{HB+i*128+rp*32+16}")
    a("L_mm:")
    a(f"ds_read_b64 v[20:21], v19 offset:{HB}")
    a("s_waitcnt lgkmcnt(0)")
    accs = [V0, V0 + 32, ACC]
    def mm(blk):
        for e in range(8):
            t = K0 + 16 * blk + 2 * e; d = accs[blk] + 4 * e
            a(f"v_mfma_f32_16x16x16_bf16 v[{d}:{d+3}], v[{t}:{t+1}], v[20:21], 0")
    mm(0)
    a("s_cmp_lt_u32 s2, 208"); a("s_cbranch_scc1 L_mm1")
    mm(1); mm(2)
    a(f"s_mov_b32 exec_lo, 0x000f000f"); a("s_mov_b32 exec_hi, 0x00f000f0")
    red_write(accs[1], 1); red_write(accs[2], 2)
    a("L_mm1:")
    a(f"s_mov_b32 exec_lo, 0x000f000f"); a("s_mov_b32 exec_hi, 0x00f000f0")
    a("s_nop 7")
    red_write(accs[0], 0)
    a("s_mov_b64 exec, -1")
    a(f"""
    v_and_b32 v20, 3, v1
    v_mul_u32_u24 v20, {36*4096}, v20
    v_bfe_u32 v21, v1, 2, 1
    v_lshl_add_u32 v20, v21, 13, v20
    v_lshrrev_b32 v21, 5, v1
    v_lshl_add_u32 v20, v21, 12, v20
    v_bfe_u32 v21, v1, 3, 2
    v_lshl_add_u32 v20, v21, 4, v20
    s_add_u32 s41, s60, s3
    s_lshl_b32 s41, s41, 14
    s_lshl_b32 s66, s59, 6
    s_add_u32 s41, s41, s66
    s_add_u32 s41, s41, {FP}
    s_lshl_b32 s66, s3, 14
    v_add_u32 v21, s66, v3
    s_cmp_ge_u32 s2, 208
    s_cselect_b32 s66, 3, 1
    s_waitcnt lgkmcnt(0)
    s_barrier
    s_cmp_ge_u32 s3, s66
    s_cbranch_scc1 L_fin
    """)
    R = K0
    red_sum(21, R)
    tag(R)
    a(f"buffer_store_dwordx4 v[{R}:{R+3}], v20, s[24:27], s41 offen sc1")
    stamp("s3pub")
    a("s_branch L_fin")
    a(f"""
    L_final:
    s_cmp_ge_u32 s2, 36
    s_cbranch_scc1 L_epoch
    s_cmp_ge_u32 s3, 4
    s_cbranch_scc1 L_fin
    s_mul_i32 s66, s2, 57
    s_lshr_b32 s66, s66, 9
    s_mul_i32 s67, s66, 9
    s_sub_u32 s67, s2, s67
    s_mul_i32 s66, s66, 1152
    s_lshl_b32 s67, s67, 7
    s_add_u32 s66, s66, s67
    s_lshr_b32 s67, s3, 1
    s_lshl_b32 s67, s67, 6
    s_add_u32 s66, s66, s67
    s_and_b32 s67, s3, 1
    s_lshl_b32 s67, s67, 3
    s_add_u32 s66, s66, s67
    v_and_b32 v20, 3, v1
    v_lshlrev_b32 v21, 4, v20
    v_lshrrev_b32 v22, 4, v1
    v_lshl_add_u32 v21, v22, 1, v21
    buffer_load_ushort v19, v21, s[4:7], s66 offen
    v_and_b32 v23, 15, v1
    v_lshlrev_b32 v24, 6, v23
    v_lshl_add_u32 v24, v22, 4, v24
    v_and_b32 v25, 1, v1
    v_lshlrev_b32 v25, 6, v25
    v_lshl_add_u32 v25, v22, 4, v25
    s_lshl_b32 s67, s2, 2
    s_add_u32 s67, s67, s3
    s_lshl_b32 s67, s67, 12
    s_add_u32 s67, s67, {FP}
    v_cmp_gt_u32 s[60:61], 2, v23
    v_cmp_eq_u32 s[62:63], 1, v20
    v_cmp_eq_u32 s[44:45], 2, v20
    v_cmp_eq_u32 s[46:47], 3, v20
    s_mov_b32 s65, {spin}
    L_fchk:
    buffer_load_dwordx4 v[32:35], v24, s[24:27], s67 offen sc1
    buffer_load_dwordx4 v[36:39], v24, s[24:27], s67 offen offset:1024 sc1
    buffer_load_dwordx4 v[40:43], v25, s[24:27], s67 offen offset:2048 sc1
    s_waitcnt vmcnt(0)
    """)
    check(32, 26); check(36, 28, 52); check(40, 26, 52)
    a(f"""
    s_cbranch_vccz L_fok
    s_sub_u32 s65, s65, 1
    s_cbranch_scc0 L_fchk
    L_fok:
    """)
    stamp("fok")
    for r in range(4): a(f"v_cndmask_b32 v{40+r}, 0, v{40+r}, s[60:61]")
    for r in range(4): a(f"v_add_f32 v{36+r}, v{36+r}, v{40+r}")
    for m in ("row_ror:8", "row_ror:4", "row_ror:2", "row_ror:1"):
        for r in range(8): a(f"v_add_f32_dpp v{32+r}, v{32+r}, v{32+r} {m} row_mask:0xf bank_mask:0xf")
    a(f"""
    v_cndmask_b32 v32, v32, v33, s[62:63]
    v_cndmask_b32 v36, v36, v37, s[62:63]
    v_cndmask_b32 v32, v32, v34, s[44:45]
    v_cndmask_b32 v36, v36, v38, s[44:45]
    v_cndmask_b32 v32, v32, v35, s[46:47]
    v_cndmask_b32 v36, v36, v39, s[46:47]
    v_cvt_pk_bf16_f32 v32, v32, v36
    v_and_b32 v36, s50, v32
    v_lshlrev_b32 v32, 16, v32
    v_mul_f32 v33, {hex(f2u(-1.4426950408889634))}, v36
    v_exp_f32 v33, v33
    v_lshlrev_b32 v19, 16, v19
    v_add_f32 v33, 1.0, v33
    v_rcp_f32 v33, v33
    v_cmp_gt_u32 vcc, 4, v23
    v_mul_f32 v33, v33, v36
    v_cvt_pk_bf16_f32 v33, v33, v33
    v_and_b32 v33, s50, v33
    v_mul_f32 v32, v32, v33
    v_cvt_pk_bf16_f32 v32, v32, v32
    v_and_b32 v32, s50, v32
    v_add_f32 v32, v32, v19
    v_cvt_pk_bf16_f32 v32, v32, v32
    s_mov_b64 exec, vcc
    buffer_store_short v32, v21, s[28:31], s66 offen
    s_mov_b64 exec, -1
    s_branch L_fin
    L_epoch:
    s_cmp_lg_u32 s2, 45
    s_cbranch_scc1 L_fin
    s_cmp_lg_u32 s3, 5
    s_cbranch_scc1 L_fin
    v_mov_b32 v20, 0
    v_add_u32 v24, 4096, v3
    s_mov_b32 s65, {spin}
    s_mov_b32 s66, {ST}
    L_echk:
    """)
    for p in range(8): a(f"buffer_load_dwordx4 v[{32+4*p}:{35+4*p}], v{3 if p < 4 else 24}, s[24:27], s66 offen offset:{(p&3)*1024} sc1")
    a("s_waitcnt vmcnt(0)")
    check(32, 26)
    for p in range(1, 8): check(32 + 4 * p, 26, 52)
    a(f"""
    s_cbranch_vccz L_eok
    s_sleep 8
    s_sub_u32 s65, s65, 1
    s_cbranch_scc0 L_echk
    L_eok:
    v_mov_b32 v21, s48
    s_mov_b64 exec, 1
    buffer_store_dword v21, v20, s[24:27], 0 offen sc1
    s_mov_b64 exec, -1
    L_fin:
    """)
    if span:
        a("s_cmp_lg_u32 s3, 0"); a("s_cbranch_scc1 L_end")
        a("s_cmp_ge_u32 s2, 7"); a("s_cbranch_scc1 L_end")
        a("s_waitcnt vmcnt(0)")
        a("s_memrealtime s[100:101]")
        a("s_waitcnt lgkmcnt(0)")
        a("s_lshl_b32 s41, s2, 3")
        a("v_mov_b32 v20, s41"); a("v_mov_b32 v23, s100"); a("v_mov_b32 v22, s98")
        a("s_mov_b64 exec, 1")
        a("buffer_store_dwordx2 v[22:23], v20, s[32:35], 0 offen offset:8")
    if diag:
        stamp("end")
        a("s_waitcnt lgkmcnt(0)")
        a("s_lshl_b32 s41, s2, 3"); a("s_add_u32 s41, s41, s3"); a("s_lshl_b32 s41, s41, 7"); a(f"s_add_u32 s41, s41, {TS_OFF}")
        a("v_mov_b32 v20, 0")
        for k in range(16):
            a(f"v_mov_b32 v22, s{70+2*k}"); a(f"v_mov_b32 v23, s{71+2*k}")
            a(f"buffer_store_dwordx2 v[22:23], v20, s[24:27], s41 offen offset:{k*8}")
    a("L_end:"); a("s_endpgm")
    a('.section .rodata,"a"'); a(".p2align 6"); a(f".amdhsa_kernel {NAME}_kernel")
    a("  .amdhsa_next_free_vgpr 256"); a("  .amdhsa_next_free_sgpr 102"); a("  .amdhsa_accum_offset 256")
    a("  .amdhsa_group_segment_fixed_size 0"); a("  .amdhsa_kernarg_size 96"); a("  .amdhsa_user_sgpr_count 2")
    a("  .amdhsa_user_sgpr_kernarg_segment_ptr 1"); a("  .amdhsa_system_sgpr_workgroup_id_x 1"); a(".end_amdhsa_kernel")
    txt = a.finalize()
    return txt, ts
if __name__ == "__main__":
    txt, _ = gen()
    open("k.s", "w").write(txt)
    txt, ts = gen(diag=True)
    open("kd.s", "w").write(txt)
    print(ts)
    open("kspan.s", "w").write(gen(span=True)[0])
    open("knont.s", "w").write(gen(span=True, ntw="", ntkv="")[0])
    open("kntkv.s", "w").write(gen(span=True, ntw="")[0])
```

```python
import sys, struct
from asmlib import Asm
NAME = "recurrent_scan__sliding_block_cached__geglu_ffn__decode"
def f2u(x): return struct.unpack("<I", struct.pack("<f", x))[0]

Y1 = 0x1000
OP = 0x40000
ST = 0x80000
FP = 0x90000
WS_USED = 0x120000
TS_OFF = 0x10000000
XSTR = 1168
XN = 0
QL = 4736
PL = QL + 4096
HB = PL + 4096
MX = HB + 2048
LS = MX + 64
OR = LS + 64
RED = OR + 8192
LDS_SIZE = RED + 49152
assert OR % 16 == 0 and RED % 16 == 0 and QL % 16 == 0

def gen(exfil=None, span=False, diag=False, NKA=6, spin=20000, ntw="nt", ntkv="nt"):
    a = Asm()
    hdr = open("cdna_kernels/" + NAME + ".s.ref").read().split("\n") if False else []
    a(f"; @launch grid=(256,1,1) block=(512,1,1) lds={LDS_SIZE}")
    a('.amdgcn_target "amdgcn-amd-amdhsa--gfx950"')
    a(".text"); a(f".globl {NAME}_kernel"); a(".p2align 8"); a(f".type {NAME}_kernel,@function"); a(f"{NAME}_kernel:")
    ts = []
    def stamp(name):
        if exfil and name == exfil[0]: a("s_memrealtime s[96:97]")
        if exfil and name == "start": a("s_memrealtime s[98:99]")
        if not diag: return
        s = 70 + 2 * len(ts); assert s + 1 <= 101
        ts.append(name); a(f"s_memrealtime s[{s}:{s+1}]")
    if diag:
        for s in range(70, 102): a(f"s_mov_b32 s{s}, 0")
    stamp("start")
    if span: a("s_memrealtime s[98:99]")
    K0, V0, W0, ACC = 64, 128, 192, 32
    a(f"""
    s_cmp_ge_u32 s2, 256
    s_cbranch_scc1 L_end
    s_load_dwordx2 s[4:5], s[0:1], 0
    s_load_dwordx2 s[8:9], s[0:1], 8
    s_load_dwordx2 s[24:25], s[0:1], 88
    s_mov_b32 s37, 8192
    s_mov_b32 s18, 4718592
    s_cmp_ge_u32 s2, 64
    s_cselect_b32 s36, 48, 24
    s_cselect_b32 s37, 9216, s37
    s_cselect_b32 s18, 5308416, s18
    s_cselect_b32 s38, 64, 0
    s_cmp_ge_u32 s2, 136
    s_cselect_b32 s36, 56, s36
    s_cselect_b32 s38, 136, s38
    s_load_dwordx2 s[16:17], s[0:1], s36
    v_lshrrev_b32 v20, 6, v0
    v_and_b32 v1, 63, v0
    s_mov_b32 s6, 4608
    v_readfirstlane_b32 s3, v20
    s_mov_b32 s7, 0x20000
    s_mov_b32 s10, 0x8000000
    s_mov_b32 s11, 0x20000
    s_mov_b32 s19, 0x20000
    s_mov_b32 s26, {0x20000000 if diag else WS_USED}
    s_mov_b32 s27, 0x20000
    """)
    a("""
    v_lshrrev_b32 v20, 4, v1
    v_bfe_u32 v21, v1, 3, 1
    v_lshl_add_u32 v21, v21, 2, v20
    v_and_b32 v22, 7, v1
    v_lshlrev_b32 v22, 4, v22
    v_mad_u32_u24 v5, v21, s37, v22
    s_lshl_b32 s40, s37, 3
    v_mad_u32_u24 v4, v21, s40, v22
    v_mul_u32_u24 v6, 4608, v21
    v_add_u32 v6, v6, v22
    v_lshlrev_b32 v3, 4, v1
    v_bfe_u32 v2, v1, 1, 3
    v_lshlrev_b32 v2, 8, v2
    v_lshl_add_u32 v2, v20, 5, v2
    v_and_b32 v22, 1, v1
    v_lshl_add_u32 v2, v22, 4, v2
    s_and_b32 s41, s3, 3
    s_mul_i32 s41, s41, 1152
    v_add_u32 v7, s41, v3
    v_mov_b32 v22, 0x100000
    v_cmp_gt_u32 vcc, 36, v1
    v_cndmask_b32 v7, v22, v7, vcc
    """)
    a("""
    s_sub_u32 s42, s2, s38
    s_lshl_b32 s42, s42, 7
    s_mul_i32 s44, s3, s40
    s_lshl_b32 s43, s37, 9
    s_add_u32 s43, s43, s44
    s_add_u32 s43, s43, s42
    s_lshl_b32 s44, s44, 3
    s_add_u32 s42, s42, s44
    """)
    a("""
    s_lshr_b32 s44, s2, 2
    s_lshl_b32 s44, s44, 21
    s_and_b32 s45, s2, 3
    s_lshl_b32 s45, s45, 17
    s_add_u32 s44, s44, s45
    s_lshl_b32 s45, s3, 14
    s_add_u32 s44, s44, s45
    s_add_u32 s44, s44, 0x180000
    s_add_u32 s45, s44, 4096
    s_add_u32 s46, s44, 8192
    s_add_u32 s47, s44, 12288
    s_cmp_ge_u32 s2, 208
    s_cselect_b32 s39, 32, 64
    s_waitcnt lgkmcnt(0)
    """)
    stamp("karg")
    def kload(G, ip):
        i = G * 2 + ip
        a(f"buffer_load_dwordx4 v[{K0+4*i}:{K0+4*i+3}], v2, s[8:11], s{44+(G>>1)} offen offset:{(G&1)*2048+ip*128} {ntkv}")
    def vload(t):
        a(f"buffer_load_dwordx4 v[{V0+4*t}:{V0+4*t+3}], v3, s[12:15], s{44+(t>>2)} offen offset:{(t&3)*1024} {ntkv}")
    def second_batch():
        a("""
        s_load_dwordx2 s[12:13], s[0:1], 16
        s_load_dwordx2 s[20:21], s[0:1], s39
        s_load_dwordx2 s[28:29], s[0:1], 72
        s_load_dwordx2 s[32:33], s[0:1], 80
        s_load_dword s48, s[24:25], 0
        """)
    a("s_setprio 3")
    a("s_cbranch_scc1 L_c_start")
    a(f"buffer_load_dwordx4 v[{V0}:{V0+3}], v7, s[4:7], 0 offen")
    a(f"buffer_load_dwordx4 v[{V0+4}:{V0+7}], v7, s[4:7], 0 offen offset:576")
    for j in range(8):
        a(f"buffer_load_dwordx4 v[{W0+4*j}:{W0+4*j+3}], v4, s[16:19], s42 offen {ntw}")
        if j < 7: a("s_add_u32 s42, s42, s37")
        if j == 1: second_batch()
    a(f"buffer_load_dwordx4 v[{W0+32}:{W0+35}], v5, s[16:19], s43 offen {ntw}")
    a("s_setprio 0")
    stamp("s1issued")
    X = V0; F = V0 + 8
    a("s_waitcnt vmcnt(9)")
    a("s_mov_b32 s50, 0xffff0000")
    for i in range(8):
        a(f"v_lshlrev_b32 v{F+2*i}, 16, v{X+i}")
        a(f"v_and_b32 v{F+2*i+1}, s50, v{X+i}")
    T = V0 + 24
    a(f"v_pk_add_f32 v[{T}:{T+1}], v[{F}:{F+1}], v[{F+2}:{F+3}]")
    for i in range(2, 8): a(f"v_pk_add_f32 v[{T}:{T+1}], v[{T}:{T+1}], v[{F+2*i}:{F+2*i+1}]")
    a(f"v_add_f32 v{T}, v{T}, v{T+1}")
    def wave_red(op, rs):
        for m in ("row_ror:8 row_mask:0xf", "row_ror:4 row_mask:0xf", "row_ror:2 row_mask:0xf", "row_ror:1 row_mask:0xf",
                  "row_bcast:15 row_mask:0xa", "row_bcast:31 row_mask:0xc"):
            for r in rs: a(f"{op}_dpp v{r}, v{r}, v{r} {m} bank_mask:0xf")
    wave_red("v_add_f32", [T])
    a(f"v_mul_f32 v{T}, {hex(f2u(1/576))}, v{T}")
    a(f"v_readlane_b32 s52, v{T}, 63")
    a("s_mov_b32 s53, s52")
    D = V0 + 26
    for i in range(8):
        a(f"v_pk_add_f32 v[{D}:{D+1}], v[{F+2*i}:{F+2*i+1}], s[52:53] neg_lo:[0,1] neg_hi:[0,1]")
        if i == 0: a(f"v_pk_mul_f32 v[{T}:{T+1}], v[{D}:{D+1}], v[{D}:{D+1}]")
        else: a(f"v_pk_fma_f32 v[{T}:{T+1}], v[{D}:{D+1}], v[{D}:{D+1}], v[{T}:{T+1}]")
    a(f"v_add_f32 v{T}, v{T}, v{T+1}")
    a(f"v_cndmask_b32 v{T}, 0, v{T}, vcc")
    wave_red("v_add_f32", [T])
    a(f"v_mul_f32 v{T}, {hex(f2u(1/576))}, v{T}")
    a(f"v_readlane_b32 s54, v{T}, 63")
    a(f"v_mov_b32 v{T}, s52")
    a(f"v_mov_b32 v{T+1}, s54")
    a(f"v_cvt_pk_bf16_f32 v{T}, v{T}, v{T+1}")
    a(f"v_and_b32 v{T+1}, s50, v{T}")
    a(f"v_lshlrev_b32 v{D}, 16, v{T}")
    a(f"v_mov_b32 v{D+1}, v{D}")
    a(f"v_add_f32 v{T+1}, {hex(f2u(1e-5))}, v{T+1}")
    a(f"v_cvt_pk_bf16_f32 v{T+1}, v{T+1}, v{T+1}")
    a(f"v_and_b32 v{T+1}, s50, v{T+1}")
    a(f"v_sqrt_f32 v{T+1}, v{T+1}")
    a(f"v_cvt_pk_bf16_f32 v{T+1}, v{T+1}, v{T+1}")
    a(f"v_and_b32 v{T+1}, s50, v{T+1}")
    a(f"v_rcp_f32 v{T}, v{T+1}")
    a(f"v_mov_b32 v{T+1}, v{T}")
    for i in range(8):
        a(f"v_pk_add_f32 v[{F+2*i}:{F+2*i+1}], v[{F+2*i}:{F+2*i+1}], v[{D}:{D+1}] neg_lo:[0,1] neg_hi:[0,1]")
    for i in range(8): a(f"v_cvt_pk_bf16_f32 v{X+i}, v{F+2*i}, v{F+2*i+1}")
    for i in range(8):
        a(f"v_lshlrev_b32 v{F+2*i}, 16, v{X+i}")
        a(f"v_and_b32 v{F+2*i+1}, s50, v{X+i}")
    for i in range(8): a(f"v_pk_mul_f32 v[{F+2*i}:{F+2*i+1}], v[{F+2*i}:{F+2*i+1}], v[{T}:{T+1}]")
    for i in range(8): a(f"v_cvt_pk_bf16_f32 v{X+i}, v{F+2*i}, v{F+2*i+1}")
    a(f"""
    s_and_b32 s41, s3, 3
    s_mul_i32 s41, s41, {XSTR}
    v_add_u32 v20, s41, v3
    s_mov_b32 exec_hi, 0xf
    ds_write_b128 v20, v[{X}:{X+3}] offset:{XN}
    ds_write_b128 v20, v[{X+4}:{X+7}] offset:{XN+576}
    s_mov_b64 exec, -1
    s_setprio 2
    """)
    stamp("ln")
    for i in range(NKA): kload(i >> 1, i & 1)
    a("s_setprio 0")
    a(f"""
    v_and_b32 v20, 3, v1
    v_mul_u32_u24 v20, {XSTR}, v20
    v_bfe_u32 v21, v1, 2, 1
    v_lshrrev_b32 v22, 4, v1
    v_lshl_add_u32 v21, v21, 2, v22
    s_lshl_b32 s41, s3, 7
    v_lshl_add_u32 v22, v21, 4, v20
    v_add_u32 v22, s41, v22
    s_lshl_b32 s41, s3, 4
    v_lshl_add_u32 v23, v21, 1, v20
    v_add_u32 v23, s41, v23
    s_waitcnt lgkmcnt(0)
    s_barrier
    ds_read_b128 v[24:27], v22 offset:{XN}
    ds_read_u16 v28, v23 offset:{XN+1024}
    """)
    common_setup_done = False
    def common_setup():
        a(f"""
        s_add_u32 s48, s48, 0x01010101
        s_mov_b32 s50, 0xffff0000
        s_mov_b32 s51, 0xffffff00
        s_mov_b32 s55, 0x05040100
        s_mov_b32 s56, 0x07060302
        s_mov_b32 s57, 0x0c0c0400
        s_mov_b32 s58, 0x04000c0c
        s_mov_b32 s14, 0x8000000
        s_mov_b32 s15, 0x20000
        s_mov_b32 s23, 0x20000
        s_mov_b32 s30, 4608
        s_mov_b32 s31, 0x20000
        s_mov_b32 s34, 256
        s_mov_b32 s35, 0x20000
        s_and_b32 s41, s48, 0xff
        v_mov_b32 v8, s41
        s_bfe_u32 s41, s48, 0x80008
        v_mov_b32 v9, s41
        s_bfe_u32 s41, s48, 0x80010
        v_mov_b32 v10, s41
        s_lshr_b32 s41, s48, 24
        v_mov_b32 v11, s41
        """)
        a(f"""
        v_lshrrev_b32 v18, 5, v1
        v_lshlrev_b32 v18, 10, v18
        v_bfe_u32 v19, v1, 4, 1
        v_lshl_add_u32 v18, v19, 6, v18
        v_and_b32 v19, 3, v1
        v_lshl_add_u32 v18, v19, 4, v18
        s_lshl_b32 s41, s3, 11
        s_add_u32 s41, s41, {RED}
        v_add_u32 v18, s41, v18
        """)
        common_setup.n += 1
    common_setup.n = 0
    common_setup()
    B2 = V0 + 8
    a(f"""
    s_waitcnt lgkmcnt(0)
    v_mov_b32 v{B2}, v28
    v_mov_b32 v{B2+1}, 0
    v_lshlrev_b32 v{B2+2}, 16, v28
    v_mov_b32 v{B2+3}, 0
    v_mov_b32 v{B2+4}, 0
    v_mov_b32 v{B2+5}, v28
    v_mov_b32 v{B2+6}, 0
    v_lshlrev_b32 v{B2+7}, 16, v28
    s_waitcnt vmcnt({NKA})
    """)
    stamp("s1data")
    TQ = V0 + 16
    for e in range(8):
        i = e >> 1; sel = 55 + (e & 1); t = TQ + 4 * e
        for jj in range(4):
            a(f"v_perm_b32 v{t+jj}, v{W0+4*(2*jj+1)+i}, v{W0+4*(2*jj)+i}, s{sel}")
        if e >= 1:
            tp = TQ + 4 * (e - 1)
            a(f"v_mfma_f32_16x16x32_bf16 v[{ACC+4*(e-1)}:{ACC+4*(e-1)+3}], v[{tp}:{tp+3}], v[24:27], 0")
    tp = TQ + 28
    a(f"v_mfma_f32_16x16x32_bf16 v[{ACC+28}:{ACC+31}], v[{tp}:{tp+3}], v[24:27], 0")
    for e in range(8):
        p = W0 + 32 + 2 * (e >> 2); bb = B2 + 2 * (e & 3)
        a(f"v_mfma_f32_16x16x16_bf16 v[{ACC+4*e}:{ACC+4*e+3}], v[{p}:{p+1}], v[{bb}:{bb+1}], v[{ACC+4*e}:{ACC+4*e+3}]")
    VALID = "0x00f000f0000f000f"
    def red_write(acc, blk):
        for e in range(8): a(f"ds_write_b128 v18, v[{acc+4*e}:{acc+4*e+3}] offset:{blk*16384+e*128}")
    a(f"s_mov_b32 exec_lo, 0x000f000f"); a("s_mov_b32 exec_hi, 0x00f000f0")
    red_write(ACC, 0)
    a("s_mov_b64 exec, -1")
    a("s_waitcnt lgkmcnt(0)"); a("s_barrier")
    def red_sum(vaddr, R):
        for p in range(16): a(f"ds_read_b128 v[{R+4*p}:{R+4*p+3}], v{vaddr} offset:{RED+p*1024}")
        n = 16
        a("s_waitcnt lgkmcnt(8)")
        for p in range(1, 8):
            a(f"v_pk_add_f32 v[{R}:{R+1}], v[{R}:{R+1}], v[{R+4*p}:{R+4*p+1}]")
            a(f"v_pk_add_f32 v[{R+2}:{R+3}], v[{R+2}:{R+3}], v[{R+4*p+2}:{R+4*p+3}]")
        a("s_waitcnt lgkmcnt(0)")
        for p in range(8, 16):
            a(f"v_pk_add_f32 v[{R}:{R+1}], v[{R}:{R+1}], v[{R+4*p}:{R+4*p+1}]")
            a(f"v_pk_add_f32 v[{R+2}:{R+3}], v[{R+2}:{R+3}], v[{R+4*p+2}:{R+4*p+3}]")
    def tag(R):
        for i in range(4): a(f"v_and_or_b32 v{R+i}, v{R+i}, s51, v{8+i}")
    def check(R, t0, acc=None):
        a(f"v_perm_b32 v{t0}, v{R+1}, v{R}, s57")
        a(f"v_perm_b32 v{t0+1}, v{R+3}, v{R+2}, s58")
        a(f"v_or_b32 v{t0}, v{t0}, v{t0+1}")
        if acc is None: a(f"v_cmp_ne_u32 vcc, s48, v{t0}")
        else:
            a(f"v_cmp_ne_u32 s[{acc}:{acc+1}], s48, v{t0}")
            a(f"s_or_b64 vcc, vcc, s[{acc}:{acc+1}]")
    a("s_cmp_lg_u32 s3, 0"); a("s_cbranch_scc1 L_s1done")
    a("s_setprio 3")
    R = V0
    red_sum(3, R)
    a(f"""
    v_cvt_pk_bf16_f32 v{R+4}, v{R}, v{R+1}
    v_cvt_pk_bf16_f32 v{R+5}, v{R+2}, v{R+3}
    v_lshl_or_b32 v{R}, v{R+4}, 16, v8
    v_and_or_b32 v{R+1}, v{R+4}, s50, v9
    v_lshl_or_b32 v{R+2}, v{R+5}, 16, v10
    v_and_or_b32 v{R+3}, v{R+5}, s50, v11
    v_and_b32 v20, 3, v1
    v_lshlrev_b32 v20, 8, v20
    v_bfe_u32 v21, v1, 2, 1
    v_lshl_add_u32 v20, v21, 7, v20
    v_lshrrev_b32 v21, 3, v1
    v_lshl_add_u32 v20, v21, 4, v20
    s_lshl_b32 s41, s2, 10
    s_add_u32 s41, s41, {Y1}
    buffer_store_dwordx4 v[{R}:{R+3}], v20, s[24:27], s41 offen sc1
    """)
    stamp("s1pub")
    a("L_s1done:")
    a("s_setprio 2")
    a("s_branch L_kb")
    a("L_c_start:")
    a("s_setprio 2")
    kload(0, 0); kload(0, 1)
    second_batch()
    for i in range(2, NKA): kload(i >> 1, i & 1)
    a("s_waitcnt lgkmcnt(0)")
    common_setup()
    a("L_kb:")
    for i in range(NKA, 16): kload(i >> 1, i & 1)
    a("s_setprio 1")
    for t in range(8): vload(t)
    a(f"""
    s_cmp_ge_u32 s2, 208
    s_cbranch_scc1 L_dec_c
    s_sub_u32 s41, s2, 46
    s_mul_i32 s62, s41, 57
    s_lshr_b32 s62, s62, 9
    s_mul_i32 s60, s62, 9
    s_sub_u32 s60, s41, s60
    s_add_u32 s59, s62, 16
    s_cmp_ge_u32 s2, 46
    s_cselect_b32 s22, 5308416, 0
    s_cselect_b32 s62, s62, 0
    s_branch L_dec_j
    L_dec_c:
    s_sub_u32 s41, s2, 208
    s_mul_i32 s62, s41, 43
    s_lshr_b32 s62, s62, 7
    s_mul_i32 s60, s62, 3
    s_sub_u32 s60, s41, s60
    s_mul_i32 s60, s60, 3
    s_mov_b32 s59, s62
    s_mov_b32 s22, 4718592
    L_dec_j:
    s_lshl_b32 s61, s62, 3
    s_add_u32 s61, s61, s3
    s_mul_i32 s61, s61, {32*1152}
    s_lshl_b32 s41, s60, 7
    s_add_u32 s61, s61, s41
    """)
    a(f"""
    v_lshrrev_b32 v16, 4, v1
    v_lshlrev_b32 v16, 10, v16
    v_and_b32 v20, 15, v1
    v_lshl_add_u32 v16, v20, 4, v16
    s_bfe_u32 s41, s2, 0x40002
    s_lshl_b32 s41, s41, 12
    s_lshr_b32 s63, s2, 6
    s_lshl_b32 s63, s63, 8
    s_add_u32 s63, s63, s41
    s_add_u32 s63, s63, {Y1}
    v_lshrrev_b32 v17, 5, v1
    v_mul_u32_u24 v17, {72*1024}, v17
    v_bfe_u32 v20, v1, 3, 2
    v_lshl_add_u32 v17, v20, 8, v17
    v_and_b32 v20, 7, v1
    v_lshl_add_u32 v17, v20, 4, v17
    s_lshl_b32 s64, s62, 12
    s_lshl_b32 s41, s3, 9
    s_and_b32 s41, s41, 0xc00
    s_add_u32 s64, s64, s41
    s_and_b32 s41, s3, 1
    s_lshl_b32 s41, s41, 7
    s_add_u32 s64, s64, s41
    s_add_u32 s64, s64, {Y1 + 64*1024}
    buffer_load_dwordx4 v[244:247], v16, s[24:27], s63 offen sc1
    buffer_load_dwordx4 v[248:251], v17, s[24:27], s64 offen sc1
    """)
    for t in range(8, 16): vload(t)
    a("s_setprio 0")
    stamp("vissued")
    a(f"""
    v_lshrrev_b32 v20, 3, v1
    v_lshlrev_b32 v20, 6, v20
    v_and_b32 v21, 7, v1
    v_lshl_add_u32 v20, v21, 1, v20
    s_lshl_b32 s41, s3, 9
    v_add_u32 v20, s41, v20
    v_and_b32 v21, 1, v1
    v_lshlrev_b32 v21, 8, v21
    v_lshrrev_b32 v22, 4, v1
    v_lshl_add_u32 v21, v22, 5, v21
    v_bfe_u32 v22, v1, 1, 1
    v_lshl_add_u32 v21, v22, 4, v21
    v_add_u32 v21, s41, v21
    s_mov_b32 s65, {spin}
    s_waitcnt vmcnt(8)
    L_qchk:
    """)
    check(244, 22)
    a(f"""
    s_cbranch_vccz L_qok
    s_sub_u32 s65, s65, 1
    s_cbranch_scc1 L_qok
    buffer_load_dwordx4 v[244:247], v16, s[24:27], s63 offen sc1
    s_waitcnt vmcnt(0)
    s_branch L_qchk
    L_qok:
    """)
    stamp("qok")
    for r in range(4): a(f"ds_write_b16_d16_hi v20, v{244+r} offset:{QL+16*r}")
    a(f"ds_read_b128 v[24:27], v21 offset:{QL}")
    a(f"ds_read_b128 v[28:31], v21 offset:{QL+128}")
    a(f"""
    s_sub_u32 s41, s2, 46
    s_cmp_ge_u32 s41, 162
    s_cbranch_scc1 L_noh
    L_guchk:
    """)
    check(248, 22)
    a(f"""
    s_cbranch_vccz L_guok
    s_sub_u32 s65, s65, 1
    s_cbranch_scc1 L_guok
    buffer_load_dwordx4 v[248:251], v17, s[24:27], s64 offen sc1
    s_waitcnt vmcnt(0)
    s_branch L_guchk
    L_guok:
    v_permlane32_swap_b32 v248, v250
    v_permlane32_swap_b32 v249, v251
    s_mov_b32 s41, {hex(f2u(2*0.7978845608028654*1.4426950408889634*0.044715))}
    v_mov_b32 v252, {hex(f2u(2*0.7978845608028654*1.4426950408889634))}
    """)
    for r in range(4): a(f"v_and_b32 v{248+r}, s50, v{248+r}")
    for r in range(2): a(f"v_mul_f32 v{244+r}, v{248+r}, v{248+r}")
    for r in range(2): a(f"v_fma_f32 v{244+r}, v{244+r}, s41, v252")
    for r in range(2): a(f"v_mul_f32 v{244+r}, v{244+r}, v{248+r}")
    for r in range(2): a(f"v_exp_f32 v{244+r}, -v{244+r}")
    for r in range(2): a(f"v_add_f32 v{244+r}, 1.0, v{244+r}")
    for r in range(2): a(f"v_rcp_f32 v{244+r}, v{244+r}")
    for r in range(2): a(f"v_mul_f32 v{244+r}, v{244+r}, v{248+r}")
    a(f"""
    v_cvt_pk_bf16_f32 v244, v244, v245
    v_and_b32 v245, s50, v244
    v_lshlrev_b32 v244, 16, v244
    v_mul_f32 v244, v244, v250
    v_mul_f32 v245, v245, v251
    v_cvt_pk_bf16_f32 v244, v244, v245
    v_bfe_u32 v22, v1, 3, 2
    v_lshlrev_b32 v22, 6, v22
    v_lshrrev_b32 v23, 5, v1
    v_lshl_add_u32 v22, v23, 5, v22
    v_and_b32 v23, 7, v1
    v_lshl_add_u32 v22, v23, 1, v22
    s_lshl_b32 s41, s3, 8
    v_add_u32 v22, s41, v22
    ds_write_b16 v22, v244 offset:{HB}
    ds_write_b16_d16_hi v22, v244 offset:{HB+16}
    L_noh:
    s_mov_b32 s66, 0x000f000f
    s_mov_b32 s67, 0x000f000f
    s_waitcnt lgkmcnt(0)
    """)
    for t in range(4):
        for ip in range(2):
            for r in range(4):
                a(f"v_cndmask_b32 v{ACC+(t*2+ip)*4+r}, 0, v{24+4*ip+r}, s[66:67]")
        if t < 3: a("s_lshl_b64 s[66:67], s[66:67], 4")
    for G4 in range(4):
        for ip in range(2):
            for par in range(2):
                G = par * 4 + G4; i = G * 2 + ip
                A = ACC + (G4 * 2 + ip) * 4; Dd = 20 + 4 * par
                C = "0" if (G4 == 0 and ip == 0) else f"v[{Dd}:{Dd+3}]"
                a(f"v_mfma_f32_16x16x32_bf16 v[{Dd}:{Dd+3}], v[{A}:{A+3}], v[{K0+4*i}:{K0+4*i+3}], {C}")
    a(f"""
    s_mov_b32 s66, 0xaaaaaaaa
    s_mov_b32 s67, 0xaaaaaaaa
    s_mov_b32 s41, {hex(f2u(128 ** -0.5))}
    v_add_f32_dpp v20, v22, v20 quad_perm:[1,0,3,2] row_mask:0xf bank_mask:0xf
    v_add_f32_dpp v21, v23, v21 quad_perm:[1,0,3,2] row_mask:0xf bank_mask:0xf
    v_add_f32_dpp v26, v24, v26 quad_perm:[1,0,3,2] row_mask:0xf bank_mask:0xf
    v_add_f32_dpp v27, v25, v27 quad_perm:[1,0,3,2] row_mask:0xf bank_mask:0xf
    v_cndmask_b32 v20, v20, v26, s[66:67]
    v_cndmask_b32 v21, v21, v27, s[66:67]
    v_cvt_pk_bf16_f32 v22, v20, v21
    v_lshlrev_b32 v20, 16, v22
    v_and_b32 v21, s50, v22
    v_mul_f32 v20, s41, v20
    v_mul_f32 v21, s41, v21
    v_cvt_pk_bf16_f32 v22, v20, v21
    s_mov_b32 s41, {hex(f2u(1.4426950408889634))}
    v_lshlrev_b32 v20, 16, v22
    v_and_b32 v21, s50, v22
    v_mul_f32 v20, s41, v20
    v_mul_f32 v21, s41, v21
    v_mov_b32 v22, v20
    v_mov_b32 v23, v21
    """)
    wave_red("v_max_f32", [22, 23])
    a(f"""
    s_lshl_b32 s41, s3, 3
    v_mov_b32 v24, s41
    s_mov_b32 exec_lo, 0
    s_mov_b32 exec_hi, 0x80000000
    ds_write_b64 v24, v[22:23] offset:{MX}
    s_mov_b64 exec, -1
    v_mov_b32 v24, 0
    s_waitcnt lgkmcnt(0)
    s_barrier
    ds_read_b128 v[32:35], v24 offset:{MX}
    ds_read_b128 v[36:39], v24 offset:{MX+16}
    ds_read_b128 v[40:43], v24 offset:{MX+32}
    ds_read_b128 v[44:47], v24 offset:{MX+48}
    """)
    stamp("qk")
    def s3load(blk):
        base = (W0 + 36) if blk == 0 else (W0 + 16 * (blk - 1))
        for j in range(4):
            a(f"buffer_load_dwordx4 v[{base+4*j}:{base+4*j+3}], v6, s[20:23], s61 offen offset:{j*1152+blk*128} {ntw}")
        return base
    s3load(0)
    a(f"""
    v_bfe_u32 v25, v1, 1, 2
    v_lshlrev_b32 v25, 6, v25
    v_and_b32 v26, 1, v1
    v_lshl_add_u32 v25, v26, 5, v25
    v_lshrrev_b32 v26, 4, v1
    v_lshl_add_u32 v25, v26, 3, v25
    v_bfe_u32 v27, v1, 3, 1
    v_lshl_add_u32 v25, v27, 2, v25
    s_lshl_b32 s41, s3, 9
    v_add_u32 v25, s41, v25
    v_lshl_add_u32 v26, v27, 2, v26
    v_lshlrev_b32 v26, 6, v26
    v_add_u32 v26, s41, v26
    v_and_b32 v27, 1, v1
    v_lshlrev_b32 v27, 4, v27
    v_mov_b32 v28, 0xffff
    v_lshlrev_b32 v27, v27, v28
    v_bfe_u32 v28, v1, 1, 2
    """)
    for i in range(4):
        a(f"v_cmp_eq_u32 vcc, {i}, v28")
        a(f"v_cndmask_b32 v{12+i}, 0, v27, vcc")
    a(f"""
    s_waitcnt lgkmcnt(0)
    v_max3_f32 v22, v32, v34, v36
    v_max3_f32 v23, v33, v35, v37
    v_max3_f32 v22, v22, v38, v40
    v_max3_f32 v23, v23, v39, v41
    v_max3_f32 v22, v22, v42, v44
    v_max3_f32 v23, v23, v43, v45
    v_max_f32 v22, v22, v46
    v_max_f32 v23, v23, v47
    v_and_b32 v30, s51, v22
    v_and_b32 v31, s51, v23
    v_sub_f32 v20, v20, v30
    v_sub_f32 v21, v21, v31
    v_exp_f32 v20, v20
    v_exp_f32 v21, v21
    v_cvt_pk_bf16_f32 v22, v20, v20
    v_cvt_pk_bf16_f32 v23, v21, v21
    ds_write_b32 v25, v22 offset:{PL}
    ds_write_b32 v25, v23 offset:{PL+256}
    ds_read_b128 v[32:35], v26 offset:{PL}
    ds_read_b128 v[36:39], v26 offset:{PL+16}
    ds_read_b128 v[40:43], v26 offset:{PL+32}
    ds_read_b128 v[44:47], v26 offset:{PL+48}
    """)
    wave_red("v_add_f32", [20, 21])
    a(f"""
    s_lshl_b32 s41, s3, 2
    v_mov_b32 v24, s41
    s_mov_b32 exec_lo, 0
    s_mov_b32 exec_hi, 0x80000000
    ds_write_b32 v24, v20 offset:{LS}
    ds_write_b32 v24, v21 offset:{LS+32}
    s_mov_b64 exec, -1
    s_waitcnt lgkmcnt(0)
    """)
    def bbuild(t):
        b = 48 + 4 * (t % 3)
        for i in range(4): a(f"v_and_b32 v{b+i}, v{12+i}, v{32+t}")
    bbuild(0)
    for t in range(16):
        if t + 1 < 16: bbuild(t + 1)
        if t >= 8: a(f"s_waitcnt vmcnt({15-t+4})")
        b = 48 + 4 * (t % 3)
        C = "0" if t == 0 else "v[60:63]"
        a(f"v_mfma_f32_16x16x32_bf16 v[60:63], v[{V0+4*t}:{V0+4*t+3}], v[{b}:{b+3}], {C}")
    stamp("pv")
    a("s_cmp_lt_u32 s2, 208"); a("s_cbranch_scc1 L_nos3bc")
    s3load(1); s3load(2)
    a("L_nos3bc:")
    a(f"""
    s_lshl_b32 s41, s3, 10
    v_add_u32 v24, s41, v3
    s_nop 4
    ds_write_b128 v24, v[60:63] offset:{OR}
    s_waitcnt lgkmcnt(0)
    s_barrier
    s_lshr_b32 s66, s2, 6
    s_bfe_u32 s67, s2, 0x40002
    s_lshl_b32 s67, s67, 2
    s_add_u32 s66, s66, s67
    s_and_b32 s67, s2, 3
    s_cmp_lg_u32 s3, 6
    s_cbranch_scc1 L_noopub
    s_setprio 3
    """)
    R = V0
    for p in range(8): a(f"ds_read_b128 v[{R+4*p}:{R+4*p+3}], v3 offset:{OR+p*1024}")
    a(f"""
    v_bfe_u32 v24, v1, 3, 1
    v_lshlrev_b32 v24, 11, v24
    v_lshrrev_b32 v25, 4, v1
    v_lshl_add_u32 v24, v25, 7, v24
    v_and_b32 v25, 7, v1
    v_lshl_add_u32 v24, v25, 4, v24
    s_lshl_b32 s41, s66, 12
    s_lshl_b32 s68, s67, 9
    s_add_u32 s41, s41, s68
    s_add_u32 s41, s41, {OP}
    s_waitcnt lgkmcnt(4)
    """)
    for p in range(1, 8):
        if p == 4: a("s_waitcnt lgkmcnt(0)")
        a(f"v_pk_add_f32 v[{R}:{R+1}], v[{R}:{R+1}], v[{R+4*p}:{R+4*p+1}]")
        a(f"v_pk_add_f32 v[{R+2}:{R+3}], v[{R+2}:{R+3}], v[{R+4*p+2}:{R+4*p+3}]")
    tag(R)
    a(f"buffer_store_dwordx4 v[{R}:{R+3}], v24, s[24:27], s41 offen sc1")
    stamp("opub")
    a(f"""
    s_setprio 0
    s_waitcnt vmcnt(1)
    s_branch L_s3go
    L_noopub:
    s_cmp_lg_u32 s3, 7
    s_cbranch_scc1 L_nospub
    s_setprio 3
    v_and_b32 v24, 1, v1
    v_lshlrev_b32 v25, 5, v24
    ds_read_b128 v[{R}:{R+3}], v25 offset:{LS}
    ds_read_b128 v[{R+4}:{R+7}], v25 offset:{LS+16}
    v_cmp_eq_u32 vcc, 1, v24
    v_cndmask_b32 v{R+8}, v30, v31, vcc
    v_lshlrev_b32 v24, 4, v24
    s_lshl_b32 s41, s66, 7
    s_lshl_b32 s68, s67, 5
    s_add_u32 s41, s41, s68
    s_add_u32 s41, s41, {ST}
    s_waitcnt lgkmcnt(0)
    v_pk_add_f32 v[{R}:{R+1}], v[{R}:{R+1}], v[{R+2}:{R+3}]
    v_pk_add_f32 v[{R+4}:{R+5}], v[{R+4}:{R+5}], v[{R+6}:{R+7}]
    v_pk_add_f32 v[{R}:{R+1}], v[{R}:{R+1}], v[{R+4}:{R+5}]
    v_add_f32 v{R+9}, v{R}, v{R+1}
    v_mov_b32 v{R+10}, v{R+8}
    v_mov_b32 v{R+11}, v{R+9}
    """)
    tag(R + 8)
    a(f"""
    s_mov_b64 exec, 3
    buffer_store_dwordx4 v[{R+8}:{R+11}], v24, s[24:27], s41 offen sc1
    s_mov_b64 exec, -1
    s_setprio 0
    s_waitcnt vmcnt(1)
    s_branch L_s3go
    L_nospub:
    s_waitcnt vmcnt(0)
    L_s3go:
    s_cmp_lt_u32 s2, 46
    s_cbranch_scc1 L_final
    """)
    stamp("s3data")
    a(f"""
    v_and_b32 v19, 3, v1
    v_lshlrev_b32 v19, 6, v19
    v_bfe_u32 v20, v1, 2, 1
    v_lshl_add_u32 v19, v20, 5, v19
    v_lshrrev_b32 v20, 4, v1
    v_lshl_add_u32 v19, v20, 3, v19
    s_lshl_b32 s41, s3, 8
    v_add_u32 v19, s41, v19
    """)
    def transp(src, dst):
        for e in range(8):
            i = e >> 1; sel = 55 + (e & 1)
            for jj in range(2):
                a(f"v_perm_b32 v{dst+2*e+jj}, v{src+4*(2*jj+1)+i}, v{src+4*(2*jj)+i}, s{sel}")
    transp(W0 + 36, K0)
    a("s_cmp_lt_u32 s2, 208"); a("s_cbranch_scc1 L_mm")
    transp(W0, K0 + 16); transp(W0 + 16, K0 + 32)
    a(f"""
    v_and_b32 v20, 3, v1
    v_lshlrev_b32 v21, 9, v20
    v_bfe_u32 v22, v1, 2, 3
    v_lshl_add_u32 v21, v22, 4, v21
    v_lshrrev_b32 v23, 5, v1
    v_lshl_add_u32 v21, v23, 12, v21
    v_lshlrev_b32 v20, 5, v20
    v_lshl_add_u32 v20, v23, 7, v20
    s_lshl_b32 s66, s62, 14
    s_lshr_b32 s41, s3, 2
    s_lshl_b32 s67, s41, 11
    s_add_u32 s66, s66, s67
    s_and_b32 s67, s3, 3
    s_lshl_b32 s67, s67, 7
    s_add_u32 s66, s66, s67
    s_add_u32 s66, s66, {OP}
    s_add_u32 s68, s66, 8192
    s_lshl_b32 s67, s62, 9
    s_lshl_b32 s41, s41, 4
    s_add_u32 s67, s67, s41
    s_add_u32 s67, s67, {ST}
    v_lshlrev_b32 v22, 1, v22
    v_lshl_add_u32 v22, v23, 6, v22
    s_lshl_b32 s41, s3, 8
    v_add_u32 v22, s41, v22
    s_mov_b32 s65, {spin}
    L_ochk:
    buffer_load_dwordx4 v[32:35], v21, s[24:27], s66 offen sc1
    buffer_load_dwordx4 v[36:39], v21, s[24:27], s68 offen sc1
    buffer_load_dwordx4 v[40:43], v20, s[24:27], s67 offen sc1
    buffer_load_dwordx4 v[44:47], v20, s[24:27], s67 offen offset:256 sc1
    s_waitcnt vmcnt(0)
    """)
    check(32, 24); check(36, 26, 52); check(40, 24, 52); check(44, 26, 52)
    a(f"""
    s_cbranch_vccz L_ook
    s_sub_u32 s65, s65, 1
    s_cbranch_scc0 L_ochk
    L_ook:
    """)
    stamp("ook")
    a("v_and_b32 v40, s51, v40"); a("v_and_b32 v44, s51, v44")
    for q in ("[1,0,3,2]", "[2,3,0,1]"):
        src = (40, 44) if q == "[1,0,3,2]" else (42, 46)
        a(f"v_max_f32_dpp v42, v{src[0]}, v{src[0]} quad_perm:{q} row_mask:0xf bank_mask:0xf")
        a(f"v_max_f32_dpp v46, v{src[1]}, v{src[1]} quad_perm:{q} row_mask:0xf bank_mask:0xf")
    a("""
    v_sub_f32 v40, v40, v42
    v_sub_f32 v44, v44, v46
    v_exp_f32 v40, v40
    v_exp_f32 v44, v44
    v_mul_f32 v41, v41, v40
    v_mul_f32 v45, v45, v44
    v_add_f32_dpp v41, v41, v41 quad_perm:[1,0,3,2] row_mask:0xf bank_mask:0xf
    v_add_f32_dpp v45, v45, v45 quad_perm:[1,0,3,2] row_mask:0xf bank_mask:0xf
    v_add_f32_dpp v41, v41, v41 quad_perm:[2,3,0,1] row_mask:0xf bank_mask:0xf
    v_add_f32_dpp v45, v45, v45 quad_perm:[2,3,0,1] row_mask:0xf bank_mask:0xf
    v_rcp_f32 v41, v41
    v_rcp_f32 v45, v45
    v_mul_f32 v40, v40, v41
    v_mul_f32 v44, v44, v45
    """)
    for r in range(4): a(f"v_mul_f32 v{32+r}, v{32+r}, v40")
    for r in range(4): a(f"v_mul_f32 v{36+r}, v{36+r}, v44")
    for q in ("[1,0,3,2]", "[2,3,0,1]"):
        for r in range(8): a(f"v_add_f32_dpp v{32+r}, v{32+r}, v{32+r} quad_perm:{q} row_mask:0xf bank_mask:0xf")
    for i in range(2):
        for rp in range(2):
            a(f"v_cvt_pk_bf16_f32 v{40+2*i+rp}, v{32+4*i+2*rp}, v{32+4*i+2*rp+1}")
    for i in range(2):
        for rp in range(2):
            a(f"ds_write_b16 v22, v{40+2*i+rp} offset:{HB+i*128+rp*32}")
            a(f"ds_write_b16_d16_hi v22, v{40+2*i+rp} offset:{HB+i*128+rp*32+16}")
    a("L_mm:")
    a(f"ds_read_b64 v[20:21], v19 offset:{HB}")
    a("s_waitcnt lgkmcnt(0)")
    accs = [V0, V0 + 32, ACC]
    def mm(blk):
        for e in range(8):
            t = K0 + 16 * blk + 2 * e; d = accs[blk] + 4 * e
            a(f"v_mfma_f32_16x16x16_bf16 v[{d}:{d+3}], v[{t}:{t+1}], v[20:21], 0")
    mm(0)
    a("s_cmp_lt_u32 s2, 208"); a("s_cbranch_scc1 L_mm1")
    mm(1); mm(2)
    a(f"s_mov_b32 exec_lo, 0x000f000f"); a("s_mov_b32 exec_hi, 0x00f000f0")
    red_write(accs[1], 1); red_write(accs[2], 2)
    a("L_mm1:")
    a(f"s_mov_b32 exec_lo, 0x000f000f"); a("s_mov_b32 exec_hi, 0x00f000f0")
    a("s_nop 7")
    red_write(accs[0], 0)
    a("s_mov_b64 exec, -1")
    a(f"""
    v_and_b32 v20, 3, v1
    v_mul_u32_u24 v20, {36*4096}, v20
    v_bfe_u32 v21, v1, 2, 1
    v_lshl_add_u32 v20, v21, 13, v20
    v_lshrrev_b32 v21, 5, v1
    v_lshl_add_u32 v20, v21, 12, v20
    v_bfe_u32 v21, v1, 3, 2
    v_lshl_add_u32 v20, v21, 4, v20
    s_add_u32 s41, s60, s3
    s_lshl_b32 s41, s41, 14
    s_lshl_b32 s66, s59, 6
    s_add_u32 s41, s41, s66
    s_add_u32 s41, s41, {FP}
    s_lshl_b32 s66, s3, 14
    v_add_u32 v21, s66, v3
    s_cmp_ge_u32 s2, 208
    s_cselect_b32 s66, 3, 1
    s_waitcnt lgkmcnt(0)
    s_barrier
    s_cmp_ge_u32 s3, s66
    s_cbranch_scc1 L_fin
    """)
    R = K0
    red_sum(21, R)
    tag(R)
    a(f"buffer_store_dwordx4 v[{R}:{R+3}], v20, s[24:27], s41 offen sc1")
    stamp("s3pub")
    a("s_branch L_fin")
    a(f"""
    L_final:
    s_cmp_ge_u32 s2, 36
    s_cbranch_scc1 L_epoch
    s_cmp_ge_u32 s3, 4
    s_cbranch_scc1 L_fin
    s_mul_i32 s66, s2, 57
    s_lshr_b32 s66, s66, 9
    s_mul_i32 s67, s66, 9
    s_sub_u32 s67, s2, s67
    s_mul_i32 s66, s66, 1152
    s_lshl_b32 s67, s67, 7
    s_add_u32 s66, s66, s67
    s_lshr_b32 s67, s3, 1
    s_lshl_b32 s67, s67, 6
    s_add_u32 s66, s66, s67
    s_and_b32 s67, s3, 1
    s_lshl_b32 s67, s67, 3
    s_add_u32 s66, s66, s67
    v_and_b32 v20, 3, v1
    v_lshlrev_b32 v21, 4, v20
    v_lshrrev_b32 v22, 4, v1
    v_lshl_add_u32 v21, v22, 1, v21
    buffer_load_ushort v19, v21, s[4:7], s66 offen
    v_and_b32 v23, 15, v1
    v_lshlrev_b32 v24, 6, v23
    v_lshl_add_u32 v24, v22, 4, v24
    v_and_b32 v25, 1, v1
    v_lshlrev_b32 v25, 6, v25
    v_lshl_add_u32 v25, v22, 4, v25
    s_lshl_b32 s67, s2, 2
    s_add_u32 s67, s67, s3
    s_lshl_b32 s67, s67, 12
    s_add_u32 s67, s67, {FP}
    v_cmp_gt_u32 s[60:61], 2, v23
    v_cmp_eq_u32 s[62:63], 1, v20
    v_cmp_eq_u32 s[44:45], 2, v20
    v_cmp_eq_u32 s[46:47], 3, v20
    s_mov_b32 s65, {spin}
    L_fchk:
    buffer_load_dwordx4 v[32:35], v24, s[24:27], s67 offen sc1
    buffer_load_dwordx4 v[36:39], v24, s[24:27], s67 offen offset:1024 sc1
    buffer_load_dwordx4 v[40:43], v25, s[24:27], s67 offen offset:2048 sc1
    s_waitcnt vmcnt(0)
    """)
    check(32, 26); check(36, 28, 52); check(40, 26, 52)
    a(f"""
    s_cbranch_vccz L_fok
    s_sub_u32 s65, s65, 1
    s_cbranch_scc0 L_fchk
    L_fok:
    """)
    stamp("fok")
    for r in range(4): a(f"v_cndmask_b32 v{40+r}, 0, v{40+r}, s[60:61]")
    for r in range(4): a(f"v_add_f32 v{36+r}, v{36+r}, v{40+r}")
    for m in ("row_ror:8", "row_ror:4", "row_ror:2", "row_ror:1"):
        for r in range(8): a(f"v_add_f32_dpp v{32+r}, v{32+r}, v{32+r} {m} row_mask:0xf bank_mask:0xf")
    a(f"""
    v_cndmask_b32 v32, v32, v33, s[62:63]
    v_cndmask_b32 v36, v36, v37, s[62:63]
    v_cndmask_b32 v32, v32, v34, s[44:45]
    v_cndmask_b32 v36, v36, v38, s[44:45]
    v_cndmask_b32 v32, v32, v35, s[46:47]
    v_cndmask_b32 v36, v36, v39, s[46:47]
    v_cvt_pk_bf16_f32 v32, v32, v36
    v_and_b32 v36, s50, v32
    v_lshlrev_b32 v32, 16, v32
    v_mul_f32 v33, {hex(f2u(-1.4426950408889634))}, v36
    v_exp_f32 v33, v33
    v_lshlrev_b32 v19, 16, v19
    v_add_f32 v33, 1.0, v33
    v_rcp_f32 v33, v33
    v_cmp_gt_u32 vcc, 4, v23
    v_mul_f32 v33, v33, v36
    v_cvt_pk_bf16_f32 v33, v33, v33
    v_and_b32 v33, s50, v33
    v_mul_f32 v32, v32, v33
    v_cvt_pk_bf16_f32 v32, v32, v32
    v_and_b32 v32, s50, v32
    v_add_f32 v32, v32, v19
    v_cvt_pk_bf16_f32 v32, v32, v32
    s_mov_b64 exec, vcc
    buffer_store_short v32, v21, s[28:31], s66 offen
    s_mov_b64 exec, -1
    s_branch L_fin
    L_epoch:
    s_cmp_lg_u32 s2, 45
    s_cbranch_scc1 L_fin
    s_cmp_lg_u32 s3, 5
    s_cbranch_scc1 L_fin
    v_mov_b32 v20, 0
    v_add_u32 v24, 4096, v3
    s_mov_b32 s65, {spin}
    s_mov_b32 s66, {ST}
    L_echk:
    """)
    for p in range(8): a(f"buffer_load_dwordx4 v[{32+4*p}:{35+4*p}], v{3 if p < 4 else 24}, s[24:27], s66 offen offset:{(p&3)*1024} sc1")
    a("s_waitcnt vmcnt(0)")
    check(32, 26)
    for p in range(1, 8): check(32 + 4 * p, 26, 52)
    a(f"""
    s_cbranch_vccz L_eok
    s_sleep 8
    s_sub_u32 s65, s65, 1
    s_cbranch_scc0 L_echk
    L_eok:
    v_mov_b32 v21, s48
    s_mov_b64 exec, 1
    buffer_store_dword v21, v20, s[24:27], 0 offen sc1
    s_mov_b64 exec, -1
    L_fin:
    """)
    if exfil:
        a(f"s_cmp_lg_u32 s3, {exfil[2]}"); a("s_cbranch_scc1 L_end")
        a(f"s_cmp_lg_u32 s2, {exfil[1]}"); a("s_cbranch_scc1 L_end")
        a("s_waitcnt vmcnt(0)")
        a("s_memrealtime s[100:101]")
        a("s_waitcnt lgkmcnt(0)")
        if exfil[0] == "end": a("s_mov_b32 s96, s100")
        a("s_sub_u32 s96, s96, s98"); a("s_lshl_b32 s96, s96, 2"); a("s_min_u32 s96, s96, 50000")
        a("L_xf:"); a("s_memrealtime s[94:95]"); a("s_waitcnt lgkmcnt(0)"); a("s_sub_u32 s94, s94, s100"); a("s_cmp_lt_u32 s94, s96"); a("s_cbranch_scc1 L_xf")
    if span:
        a("s_cmp_lg_u32 s3, 0"); a("s_cbranch_scc1 L_end")
        a("s_cmp_ge_u32 s2, 7"); a("s_cbranch_scc1 L_end")
        a("s_waitcnt vmcnt(0)")
        a("s_memrealtime s[100:101]")
        a("s_waitcnt lgkmcnt(0)")
        a("s_lshl_b32 s41, s2, 3")
        a("v_mov_b32 v20, s41"); a("v_mov_b32 v23, s100"); a("v_mov_b32 v22, s98")
        a("s_mov_b64 exec, 1")
        a("buffer_store_dwordx2 v[22:23], v20, s[32:35], 0 offen offset:8")
    if diag:
        stamp("end")
        a("s_waitcnt lgkmcnt(0)")
        a("s_lshl_b32 s41, s2, 3"); a("s_add_u32 s41, s41, s3"); a("s_lshl_b32 s41, s41, 7"); a(f"s_add_u32 s41, s41, {TS_OFF}")
        a("v_mov_b32 v20, 0")
        for k in range(16):
            a(f"v_mov_b32 v22, s{70+2*k}"); a(f"v_mov_b32 v23, s{71+2*k}")
            a(f"buffer_store_dwordx2 v[22:23], v20, s[24:27], s41 offen offset:{k*8}")
    a("L_end:"); a("s_endpgm")
    a('.section .rodata,"a"'); a(".p2align 6"); a(f".amdhsa_kernel {NAME}_kernel")
    a("  .amdhsa_next_free_vgpr 256"); a("  .amdhsa_next_free_sgpr 102"); a("  .amdhsa_accum_offset 256")
    a("  .amdhsa_group_segment_fixed_size 0"); a("  .amdhsa_kernarg_size 96"); a("  .amdhsa_user_sgpr_count 2")
    a("  .amdhsa_user_sgpr_kernarg_segment_ptr 1"); a("  .amdhsa_system_sgpr_workgroup_id_x 1"); a(".end_amdhsa_kernel")
    txt = a.finalize()
    return txt, ts
if __name__ == "__main__":
    txt, _ = gen()
    open("k.s", "w").write(txt)
    txt, ts = gen(diag=True)
    open("kd.s", "w").write(txt)
    print(ts)
    for nm in ("end", "karg", "s1data", "qok", "pv"):
        open(f"kx_{nm}.s", "w").write(gen(exfil=(nm, 0, 0))[0])
```

```python
import sys, struct
from asmlib import Asm
NAME = "recurrent_scan__sliding_block_cached__geglu_ffn__decode"
def f2u(x): return struct.unpack("<I", struct.pack("<f", x))[0]

Y1 = 0x1000
OP = 0x40000
ST = 0x80000
FP = 0x90000
WS_USED = 0x120000
TS_OFF = 0x10000000
XSTR = 1168
XN = 0
QL = 4736
PL = QL + 4096
HB = PL + 4096
MX = HB + 2048
LS = MX + 256
OR = LS + 64
RED = OR + 8192
LDS_SIZE = RED + 3 * 8192
assert OR % 16 == 0 and RED % 16 == 0 and QL % 16 == 0
DROP = 0x40000000

def gen(ssel=None, b3=False, pref=True, psleep=0, fsleep=0, exfil=None, diag=False, clk=False, NKA=6, NKA0=2, NVA=6, spin=20000, ntw="nt", ntkv="nt"):
    a = Asm()
    a(f"; @launch grid=(256,1,1) block=(512,1,1) lds={LDS_SIZE}")
    a('.amdgcn_target "amdgcn-amd-amdhsa--gfx950"')
    a(".text"); a(f".globl {NAME}_kernel"); a(".p2align 8"); a(f".type {NAME}_kernel,@function"); a(f"{NAME}_kernel:")
    ts = []
    def stamp(name, op="s_memrealtime"):
        if exfil and name == exfil[0]: a("s_memrealtime s[96:97]")
        if exfil and name == "start": a("s_memrealtime s[98:99]")
        if not diag: return
        if ssel is not None and name not in ssel: return
        s = 70 + 2 * len(ts); assert s + 1 <= 101
        ts.append(name); a(f"{op} s[{s}:{s+1}]")
    if diag:
        for s in range(70, 102): a(f"s_mov_b32 s{s}, 0")
    stamp("start")
    if clk: stamp("clk0", "s_memtime")
    K0, V0, W0, ACC = 64, 128, 192, 32
    a(f"""
    s_cmp_ge_u32 s2, 256
    s_cbranch_scc1 L_end
    s_load_dwordx2 s[4:5], s[0:1], 0
    s_load_dwordx2 s[8:9], s[0:1], 8
    s_load_dwordx2 s[24:25], s[0:1], 88
    s_mov_b32 s37, 8192
    s_mov_b32 s18, 4718592
    s_cmp_ge_u32 s2, 64
    s_cselect_b32 s36, 48, 24
    s_cselect_b32 s37, 9216, s37
    s_cselect_b32 s18, 5308416, s18
    s_cselect_b32 s38, 64, 0
    s_cmp_ge_u32 s2, 136
    s_cselect_b32 s36, 56, s36
    s_cselect_b32 s38, 136, s38
    s_load_dwordx2 s[16:17], s[0:1], s36
    v_lshrrev_b32 v20, 6, v0
    v_and_b32 v1, 63, v0
    s_mov_b32 s6, 4608
    v_readfirstlane_b32 s3, v20
    s_mov_b32 s7, 0x20000
    s_mov_b32 s10, 0x8000000
    s_mov_b32 s11, 0x20000
    s_mov_b32 s19, 0x20000
    s_mov_b32 s26, {0x20000000 if diag else WS_USED}
    s_mov_b32 s27, 0x20000
    v_lshrrev_b32 v20, 4, v1
    v_bfe_u32 v21, v1, 3, 1
    v_lshl_add_u32 v21, v21, 2, v20
    v_and_b32 v22, 7, v1
    v_lshlrev_b32 v22, 4, v22
    v_mad_u32_u24 v5, v21, s37, v22
    s_lshl_b32 s40, s37, 3
    v_mad_u32_u24 v4, v21, s40, v22
    v_mul_u32_u24 v6, 1152, v21
    v_add_u32 v6, v6, v22
    v_lshlrev_b32 v3, 4, v1
    v_bfe_u32 v2, v1, 1, 3
    v_lshlrev_b32 v2, 8, v2
    v_lshl_add_u32 v2, v20, 5, v2
    v_and_b32 v22, 1, v1
    v_lshl_add_u32 v2, v22, 4, v2
    s_and_b32 s41, s3, 3
    s_mul_i32 s41, s41, 1152
    v_add_u32 v7, s41, v3
    v_mov_b32 v22, 0x100000
    v_cmp_gt_u32 vcc, 36, v1
    v_cndmask_b32 v7, v22, v7, vcc
    s_sub_u32 s42, s2, s38
    s_lshl_b32 s42, s42, 7
    s_mul_i32 s44, s3, s40
    s_lshl_b32 s43, s37, 9
    s_add_u32 s43, s43, s44
    s_add_u32 s43, s43, s42
    s_lshl_b32 s44, s44, 3
    s_add_u32 s42, s42, s44
    s_lshr_b32 s44, s2, 2
    s_lshl_b32 s44, s44, 21
    s_and_b32 s45, s2, 3
    s_lshl_b32 s45, s45, 17
    s_add_u32 s44, s44, s45
    s_lshl_b32 s45, s3, 14
    s_add_u32 s44, s44, s45
    s_add_u32 s44, s44, 0x180000
    s_add_u32 s45, s44, 4096
    s_add_u32 s46, s44, 8192
    s_add_u32 s47, s44, 12288
    s_cmp_ge_u32 s2, 208
    s_cselect_b32 s39, 32, 64
    s_waitcnt lgkmcnt(0)
    """)
    def kload(i):
        G, ip = i >> 1, i & 1
        a(f"buffer_load_dwordx4 v[{K0+4*i}:{K0+4*i+3}], v2, s[8:11], s{44+(G>>1)} offen offset:{(G&1)*2048+ip*128} {ntkv}")
    def vload(t):
        a(f"buffer_load_dwordx4 v[{V0+4*t}:{V0+4*t+3}], v3, s[12:15], s{44+(t>>2)} offen offset:{(t&3)*1024} {ntkv}")
    S3B = [W0 + 36, W0, W0 + 16]
    def s3load(blk):
        base = S3B[blk]
        for j in range(4):
            a(f"buffer_load_dwordx4 v[{base+4*j}:{base+4*j+3}], v6, s[20:23], s{(61,35,36,37)[j]} offen offset:{blk*128} {ntw}")
    def second_batch():
        a("""
        s_load_dwordx2 s[12:13], s[0:1], 16
        s_load_dwordx2 s[20:21], s[0:1], s39
        s_load_dwordx2 s[28:29], s[0:1], 72
        s_load_dword s48, s[24:25], 0
        """)
    def wave_red(op, rs):
        for m in ("row_ror:8 row_mask:0xf", "row_ror:4 row_mask:0xf", "row_ror:2 row_mask:0xf", "row_ror:1 row_mask:0xf",
                  "row_bcast:15 row_mask:0xa", "row_bcast:31 row_mask:0xc"):
            for r in rs: a(f"{op}_dpp v{r}, v{r}, v{r} {m} bank_mask:0xf")
    def common_setup():
        a(f"""
        s_add_u32 s48, s48, 0x01010101
        s_mov_b32 s50, 0xffff0000
        s_mov_b32 s51, 0xffffff00
        s_mov_b32 s55, 0x05040100
        s_mov_b32 s56, 0x07060302
        s_mov_b32 s57, 0x0c0c0400
        s_mov_b32 s58, 0x04000c0c
        s_mov_b32 s14, 0x8000000
        s_mov_b32 s15, 0x20000
        s_mov_b32 s23, 0x20000
        s_mov_b32 s30, 4608
        s_mov_b32 s31, 0x20000
        s_mov_b32 s32, 0xff00ff00
        s_mov_b32 s33, 0xff00ff00
        s_and_b32 s41, s48, 0xff
        v_mov_b32 v8, s41
        s_bfe_u32 s41, s48, 0x80008
        v_mov_b32 v9, s41
        s_bfe_u32 s41, s48, 0x80010
        v_mov_b32 v10, s41
        s_lshr_b32 s41, s48, 24
        v_mov_b32 v11, s41
        """)
    def lds_clear():
        a(f"""
        s_not_b32 s41, s48
        s_sub_u32 s41, s41, 0x01010101
        v_mov_b32 v19, s41
        s_lshl_b32 s41, s3, 10
        v_add_u32 v18, s41, v3
        v_and_b32 v29, 0xf0, v3
        ds_write_b32 v18, v19 offset:{RED}
        ds_write_b32 v29, v19 offset:{MX}
        s_waitcnt lgkmcnt(0)
        """)
    def dense(acc):
        for r in range(4): a(f"v_permlane32_swap_b32 v{acc+r}, v{acc+4+r}")
        for r in range(4): a(f"v_permlane32_swap_b32 v{acc+8+r}, v{acc+12+r}")
        for r in range(4): a(f"v_add_f32_dpp v{acc+r}, v{acc+4+r}, v{acc+r} row_shl:4 row_mask:0xf bank_mask:0x5")
        for r in range(4): a(f"v_add_f32_dpp v{acc+r}, v{acc+8+r}, v{acc+12+r} row_shr:4 row_mask:0xf bank_mask:0xa")
    def red_sum(vaddr, base, R):
        for p in range(8): a(f"ds_read_b128 v[{R+4*p}:{R+4*p+3}], v{vaddr} offset:{base+p*1024}")
    def red_add(R):
        a("s_waitcnt lgkmcnt(4)")
        for p in range(1, 8):
            if p == 4: a("s_waitcnt lgkmcnt(0)")
            a(f"v_pk_add_f32 v[{R}:{R+1}], v[{R}:{R+1}], v[{R+4*p}:{R+4*p+1}]")
            a(f"v_pk_add_f32 v[{R+2}:{R+3}], v[{R+2}:{R+3}], v[{R+4*p+2}:{R+4*p+3}]")
    def tag(R):
        for i in range(4): a(f"v_and_or_b32 v{R+i}, v{R+i}, s51, v{8+i}")
    def check(R, t0, acc=None):
        a(f"v_perm_b32 v{t0}, v{R+1}, v{R}, s57")
        a(f"v_perm_b32 v{t0+1}, v{R+3}, v{R+2}, s58")
        a(f"v_or_b32 v{t0}, v{t0}, v{t0+1}")
        if acc is None: a(f"v_cmp_ne_u32 vcc, s48, v{t0}")
        else:
            a(f"v_cmp_ne_u32 s[{acc}:{acc+1}], s48, v{t0}")
            a(f"s_or_b64 vcc, vcc, s[{acc}:{acc+1}]")

    a("s_setprio 3")
    a("s_cbranch_scc1 L_c_start")
    a("s_cmp_ge_u32 s3, 4"); a("s_cbranch_scc1 L_nox")
    a(f"buffer_load_dwordx4 v[{V0}:{V0+3}], v7, s[4:7], 0 offen")
    a(f"buffer_load_dwordx4 v[{V0+4}:{V0+7}], v7, s[4:7], 0 offen offset:576")
    a("L_nox:")
    for j in range(8):
        a(f"buffer_load_dwordx4 v[{W0+4*j}:{W0+4*j+3}], v4, s[16:19], s42 offen {ntw}")
        if j < 7: a("s_add_u32 s42, s42, s37")
        if j == 1: second_batch()
    a(f"buffer_load_dwordx4 v[{W0+32}:{W0+35}], v5, s[16:19], s43 offen {ntw}")
    a("s_setprio 0")
    a("s_cmp_ge_u32 s3, 4"); a("s_cbranch_scc1 L_noln")
    X = V0; F = V0 + 8; T = V0 + 24; D = V0 + 26
    a("s_waitcnt vmcnt(9)")
    a("s_mov_b32 s50, 0xffff0000")
    for i in range(8):
        a(f"v_lshlrev_b32 v{F+2*i}, 16, v{X+i}")
        a(f"v_and_b32 v{F+2*i+1}, s50, v{X+i}")
    a(f"v_pk_add_f32 v[{T}:{T+1}], v[{F}:{F+1}], v[{F+2}:{F+3}]")
    for i in range(2, 8): a(f"v_pk_add_f32 v[{T}:{T+1}], v[{T}:{T+1}], v[{F+2*i}:{F+2*i+1}]")
    a(f"v_add_f32 v{T}, v{T}, v{T+1}")
    wave_red("v_add_f32", [T])
    a(f"v_mul_f32 v{T}, {hex(f2u(1/576))}, v{T}")
    a(f"v_readlane_b32 s52, v{T}, 63")
    a("s_mov_b32 s53, s52")
    for i in range(8):
        a(f"v_pk_add_f32 v[{D}:{D+1}], v[{F+2*i}:{F+2*i+1}], s[52:53] neg_lo:[0,1] neg_hi:[0,1]")
        if i == 0: a(f"v_pk_mul_f32 v[{T}:{T+1}], v[{D}:{D+1}], v[{D}:{D+1}]")
        else: a(f"v_pk_fma_f32 v[{T}:{T+1}], v[{D}:{D+1}], v[{D}:{D+1}], v[{T}:{T+1}]")
    a(f"v_add_f32 v{T}, v{T}, v{T+1}")
    a(f"v_cndmask_b32 v{T}, 0, v{T}, vcc")
    wave_red("v_add_f32", [T])
    a(f"""
    v_mul_f32 v{T}, {hex(f2u(1/576))}, v{T}
    v_readlane_b32 s54, v{T}, 63
    v_mov_b32 v{T}, s52
    v_mov_b32 v{T+1}, s54
    v_cvt_pk_bf16_f32 v{T}, v{T}, v{T+1}
    v_and_b32 v{T+1}, s50, v{T}
    v_lshlrev_b32 v{D}, 16, v{T}
    v_mov_b32 v{D+1}, v{D}
    v_add_f32 v{T+1}, {hex(f2u(1e-5))}, v{T+1}
    v_cvt_pk_bf16_f32 v{T+1}, v{T+1}, v{T+1}
    v_and_b32 v{T+1}, s50, v{T+1}
    v_sqrt_f32 v{T+1}, v{T+1}
    v_cvt_pk_bf16_f32 v{T+1}, v{T+1}, v{T+1}
    v_and_b32 v{T+1}, s50, v{T+1}
    v_rcp_f32 v{T}, v{T+1}
    v_mov_b32 v{T+1}, v{T}
    """)
    for i in range(8):
        a(f"v_pk_add_f32 v[{F+2*i}:{F+2*i+1}], v[{F+2*i}:{F+2*i+1}], v[{D}:{D+1}] neg_lo:[0,1] neg_hi:[0,1]")
    for i in range(8): a(f"v_cvt_pk_bf16_f32 v{X+i}, v{F+2*i}, v{F+2*i+1}")
    for i in range(8):
        a(f"v_lshlrev_b32 v{F+2*i}, 16, v{X+i}")
        a(f"v_and_b32 v{F+2*i+1}, s50, v{X+i}")
    for i in range(8): a(f"v_pk_mul_f32 v[{F+2*i}:{F+2*i+1}], v[{F+2*i}:{F+2*i+1}], v[{T}:{T+1}]")
    for i in range(8): a(f"v_cvt_pk_bf16_f32 v{X+i}, v{F+2*i}, v{F+2*i+1}")
    a(f"""
    s_and_b32 s41, s3, 3
    s_mul_i32 s41, s41, {XSTR}
    v_add_u32 v20, s41, v3
    s_mov_b32 exec_hi, 0xf
    ds_write_b128 v20, v[{X}:{X+3}] offset:{XN}
    ds_write_b128 v20, v[{X+4}:{X+7}] offset:{XN+576}
    s_mov_b64 exec, -1
    L_noln:
    v_and_b32 v20, 3, v1
    v_mul_u32_u24 v20, {XSTR}, v20
    v_bfe_u32 v21, v1, 2, 1
    v_lshrrev_b32 v22, 4, v1
    v_lshl_add_u32 v21, v21, 2, v22
    s_lshl_b32 s41, s3, 7
    v_lshl_add_u32 v22, v21, 4, v20
    v_add_u32 v22, s41, v22
    s_lshl_b32 s41, s3, 4
    v_lshl_add_u32 v23, v21, 1, v20
    v_add_u32 v23, s41, v23
    s_waitcnt lgkmcnt(0)
    """)
    lds_clear()
    stamp("ln")
    a(f"""
    s_barrier
    ds_read_b128 v[24:27], v22 offset:{XN}
    ds_read_u16 v28, v23 offset:{XN+1024}
    s_setprio 3
    """)
    for i in range(NKA0): kload(i)
    a("s_cmp_lt_u32 s2, 64"); a("s_cbranch_scc1 L_noka")
    for i in range(NKA0, NKA): kload(i)
    a("L_noka:")
    a("s_setprio 0")
    stamp("kaiss")
    common_setup()
    B2 = V0 + 8; BU = V0
    a("s_waitcnt lgkmcnt(0)")
    for r in range(4):
        a(f"v_cndmask_b32 v{BU+r}, v{24+r}, 0, s[32:33]")
        a(f"v_cndmask_b32 v{BU+4+r}, 0, v{24+r}, s[32:33]")
    a(f"""
    v_lshlrev_b32 v29, 16, v28
    v_cndmask_b32 v{B2}, v28, 0, s[32:33]
    v_mov_b32 v{B2+1}, 0
    v_cndmask_b32 v{B2+2}, 0, v29, s[32:33]
    v_mov_b32 v{B2+3}, 0
    v_mov_b32 v{B2+4}, 0
    v_mov_b32 v{B2+5}, v{B2}
    v_mov_b32 v{B2+6}, 0
    v_mov_b32 v{B2+7}, v{B2+2}
    s_cmp_ge_u32 s2, 64
    s_cbranch_scc1 L_s1w
    s_waitcnt vmcnt({NKA0})
    L_s1w:
    s_waitcnt vmcnt({NKA})
    """)
    stamp("s1data")
    for e in range(8):
        p = W0 + 32 + 2 * (e >> 2); bb = B2 + 2 * (e & 3); d = ACC + 4 * ((e >> 1))
        if e & 1 == 0: a(f"v_mfma_f32_16x16x16_bf16 v[{d}:{d+3}], v[{p}:{p+1}], v[{bb}:{bb+1}], 0")
    for e in range(8):
        p = W0 + 32 + 2 * (e >> 2); bb = B2 + 2 * (e & 3); d = ACC + 4 * ((e >> 1))
        if e & 1 == 1: a(f"v_mfma_f32_16x16x16_bf16 v[{d}:{d+3}], v[{p}:{p+1}], v[{bb}:{bb+1}], v[{d}:{d+3}]")
    TQ = V0 + 16
    order = [0, 2, 4, 6, 1, 3, 5, 7]
    def s1mf(e):
        t = TQ + 4 * e; d = ACC + 4 * (e >> 1); b = BU + 4 * (e & 1)
        a(f"v_mfma_f32_16x16x32_bf16 v[{d}:{d+3}], v[{t}:{t+3}], v[{b}:{b+3}], v[{d}:{d+3}]")
    for n, e in enumerate(order):
        i = e >> 1; sel = 55 + (e & 1); t = TQ + 4 * e
        for jj in range(4):
            a(f"v_perm_b32 v{t+jj}, v{W0+4*(2*jj+1)+i}, v{W0+4*(2*jj)+i}, s{sel}")
        if n >= 1: s1mf(order[n - 1])
    s1mf(order[7])
    a(f"""
    v_and_b32 v20, 3, v1
    v_lshlrev_b32 v20, 8, v20
    v_bfe_u32 v21, v1, 4, 1
    v_lshl_add_u32 v20, v21, 7, v20
    v_bfe_u32 v21, v1, 2, 1
    v_lshl_add_u32 v20, v21, 6, v20
    v_lshrrev_b32 v21, 5, v1
    v_lshl_add_u32 v20, v21, 5, v20
    v_bfe_u32 v21, v1, 3, 1
    v_lshl_add_u32 v20, v21, 4, v20
    """)
    dense(ACC)
    tag(ACC)
    a(f"ds_write_b128 v18, v[{ACC}:{ACC+3}] offset:{RED}")
    stamp("s1mf")
    a("s_cmp_lg_u32 s3, 7"); a("s_cbranch_scc1 L_s1done")
    a("s_setprio 3")
    R = V0
    a(f"s_lshl_b32 s41, s2, 10"); a(f"s_add_u32 s41, s41, {Y1}")
    a(f"s_mov_b32 s65, {spin}")
    a("L_s1chk:")
    red_sum(3, RED, R)
    a("s_waitcnt lgkmcnt(0)")
    check(R, 22)
    for p in range(1, 8): check(R + 4 * p, 22, 52)
    a("""
    s_cbranch_vccz L_s1ok
    s_sub_u32 s65, s65, 1
    s_cbranch_scc0 L_s1chk
    L_s1ok:
    """)
    stamp("s1bar")
    red_add(R)
    a(f"""
    v_cvt_pk_bf16_f32 v{R+4}, v{R}, v{R+1}
    v_cvt_pk_bf16_f32 v{R+5}, v{R+2}, v{R+3}
    v_lshl_or_b32 v{R}, v{R+4}, 16, v8
    v_and_or_b32 v{R+1}, v{R+4}, s50, v9
    v_lshl_or_b32 v{R+2}, v{R+5}, 16, v10
    v_and_or_b32 v{R+3}, v{R+5}, s50, v11
    """)
    stamp("s1red")
    a(f"""
    buffer_store_dwordx4 v[{R}:{R+3}], v20, s[24:27], s41 offen sc1
    """)
    stamp("s1pub")
    a("L_s1done:")
    a("s_setprio 3")
    a("s_cmp_ge_u32 s2, 64"); a("s_cbranch_scc1 L_kb")
    a("s_barrier")
    for i in range(NKA0, NKA): kload(i)
    a("s_branch L_kb")
    a("L_c_start:")
    a("s_setprio 3")
    kload(0); kload(1)
    second_batch()
    if pref:
        a(f"""
        s_getpc_b64 s[52:53]
        L_pc0:
        s_sub_u32 s52, s52, L_pc0 - {NAME}_kernel
        s_subb_u32 s53, s53, 0
        s_mov_b32 s54, L_codeend - {NAME}_kernel
        s_mov_b32 s55, 0x20000
        s_lshl_b32 s41, s3, 11
        buffer_load_dwordx4 v[252:255], v3, s[52:55], s41 offen
        buffer_load_dwordx4 v[252:255], v3, s[52:55], s41 offen offset:1024
        """)
    a("s_waitcnt lgkmcnt(0)")
    lds_clear()
    a("s_barrier")
    for i in range(2, NKA): kload(i)
    common_setup()
    a("L_kb:")
    for i in range(NKA, 16): kload(i)
    a(f"""
    s_cmp_ge_u32 s2, 208
    s_cbranch_scc1 L_dec_c
    s_sub_u32 s41, s2, 46
    s_mul_i32 s62, s41, 57
    s_lshr_b32 s62, s62, 9
    s_mul_i32 s60, s62, 9
    s_sub_u32 s60, s41, s60
    s_add_u32 s59, s62, 16
    s_cmp_ge_u32 s2, 46
    s_cselect_b32 s22, 5308416, 0
    s_cselect_b32 s62, s62, 0
    s_branch L_dec_j
    L_dec_c:
    s_sub_u32 s41, s2, 208
    s_mul_i32 s62, s41, 43
    s_lshr_b32 s62, s62, 7
    s_mul_i32 s60, s62, 3
    s_sub_u32 s60, s41, s60
    s_mul_i32 s60, s60, 3
    s_mov_b32 s59, s62
    s_mov_b32 s22, 4718592
    L_dec_j:
    s_lshl_b32 s61, s62, 3
    s_add_u32 s61, s61, s3
    s_mul_i32 s61, s61, {32*1152}
    s_lshl_b32 s41, s60, 7
    s_add_u32 s61, s61, s41
    s_add_u32 s35, s61, 9216
    s_add_u32 s36, s61, 18432
    s_add_u32 s37, s61, 27648
    v_lshrrev_b32 v16, 4, v1
    v_lshlrev_b32 v16, 10, v16
    v_and_b32 v20, 15, v1
    v_lshl_add_u32 v16, v20, 4, v16
    s_bfe_u32 s41, s2, 0x40002
    s_lshl_b32 s41, s41, 12
    s_lshr_b32 s63, s2, 6
    s_lshl_b32 s63, s63, 8
    s_add_u32 s63, s63, s41
    s_add_u32 s63, s63, {Y1}
    v_lshrrev_b32 v17, 4, v1
    v_bfe_u32 v20, v1, 2, 1
    v_lshl_add_u32 v17, v20, 2, v17
    v_lshlrev_b32 v17, 4, v17
    v_and_b32 v20, 3, v1
    v_lshl_add_u32 v7, v20, 12, v17
    v_lshl_add_u32 v17, v20, 8, v17
    s_lshl_b32 s64, s62, 12
    s_lshl_b32 s41, s3, 9
    s_and_b32 s41, s41, 0xc00
    s_add_u32 s64, s64, s41
    s_and_b32 s41, s3, 1
    s_lshl_b32 s41, s41, 7
    s_add_u32 s64, s64, s41
    s_add_u32 s64, s64, {Y1 + 64*1024}
    s_add_u32 s38, s64, {72*1024}
    v_lshrrev_b32 v20, 3, v1
    v_lshlrev_b32 v20, 6, v20
    v_and_b32 v21, 7, v1
    v_lshl_add_u32 v20, v21, 1, v20
    s_lshl_b32 s41, s3, 9
    v_add_u32 v20, s41, v20
    v_and_b32 v21, 1, v1
    v_lshlrev_b32 v21, 8, v21
    v_lshrrev_b32 v22, 4, v1
    v_lshl_add_u32 v21, v22, 5, v21
    v_bfe_u32 v22, v1, 1, 1
    v_lshl_add_u32 v21, v22, 4, v21
    v_add_u32 v21, s41, v21
    s_mov_b32 s65, {spin}
    s_cmp_lt_u32 s2, 208
    s_cbranch_scc1 L_v_ab
    s_setprio 3
    """)
    for t in range(NVA, 16): vload(t)
    a("L_v_ab:")
    stamp("kbiss")
    a("s_setprio 3")
    a("buffer_load_dwordx4 v[244:247], v16, s[24:27], s63 offen sc1")
    a("s_setprio 2")
    for t in range(NVA): vload(t)
    a("buffer_load_dwordx4 v[248:251], v16, s[24:27], s63 offen sc1")
    a(f"s_setprio 0")
    stamp("vissued")
    a(f"s_waitcnt vmcnt({NVA+1})")
    check(244, 22)
    a(f"""
    s_cbranch_vccz L_qok
    L_qchk:
    s_waitcnt vmcnt(0)
    v_mov_b32 v244, v248
    v_mov_b32 v245, v249
    v_mov_b32 v246, v250
    v_mov_b32 v247, v251
    """)
    check(244, 22)
    a(f"""
    s_cbranch_vccz L_qok
    s_sub_u32 s65, s65, 1
    s_cbranch_scc1 L_qok
    buffer_load_dwordx4 v[248:251], v16, s[24:27], s63 offen sc1
    s_branch L_qchk
    L_qok:
    """)
    stamp("qok")
    for r in range(4): a(f"ds_write_b16_d16_hi v20, v{244+r} offset:{QL+16*r}")
    a(f"ds_read_b128 v[24:27], v21 offset:{QL}")
    a(f"ds_read_b128 v[28:31], v21 offset:{QL+128}")
    a(f"""
    v_bfe_u32 v19, v1, 1, 2
    v_lshlrev_b32 v19, 6, v19
    v_and_b32 v16, 1, v1
    v_lshl_add_u32 v19, v16, 5, v19
    v_lshrrev_b32 v16, 4, v1
    v_lshl_add_u32 v19, v16, 3, v19
    v_bfe_u32 v22, v1, 3, 1
    v_lshl_add_u32 v19, v22, 2, v19
    s_lshl_b32 s41, s3, 9
    v_add_u32 v19, s41, v19
    v_lshl_add_u32 v16, v22, 2, v16
    v_lshlrev_b32 v16, 6, v16
    v_add_u32 v16, s41, v16
    v_and_b32 v22, 1, v1
    v_lshlrev_b32 v22, 4, v22
    v_mov_b32 v23, 0xffff
    v_lshlrev_b32 v22, v22, v23
    v_bfe_u32 v23, v1, 1, 2
    """)
    for i in range(4):
        a(f"v_cmp_eq_u32 vcc, {i}, v23")
        a(f"v_cndmask_b32 v{12+i}, 0, v22, vcc")
    a("""
    s_mov_b32 s66, 0x000f000f
    s_mov_b32 s67, 0x000f000f
    s_waitcnt lgkmcnt(0)
    """)
    for t in range(4):
        for ip in range(2):
            for r in range(4):
                a(f"v_cndmask_b32 v{ACC+(t*2+ip)*4+r}, 0, v{24+4*ip+r}, s[66:67]")
        if t < 3: a("s_lshl_b64 s[66:67], s[66:67], 4")
    for G4 in range(4):
        for ip in range(2):
            for par in range(2):
                G = par * 4 + G4; i = G * 2 + ip
                A = ACC + (G4 * 2 + ip) * 4; Dd = 20 + 4 * par
                C = "0" if (G4 == 0 and ip == 0) else f"v[{Dd}:{Dd+3}]"
                a(f"v_mfma_f32_16x16x32_bf16 v[{Dd}:{Dd+3}], v[{A}:{A+3}], v[{K0+4*i}:{K0+4*i+3}], {C}")
    stamp("qkmf")
    a(f"""
    s_mov_b32 s66, 0xaaaaaaaa
    s_mov_b32 s67, 0xaaaaaaaa
    s_mov_b32 s41, {hex(f2u(128 ** -0.5))}
    v_add_f32_dpp v20, v22, v20 quad_perm:[1,0,3,2] row_mask:0xf bank_mask:0xf
    v_add_f32_dpp v21, v23, v21 quad_perm:[1,0,3,2] row_mask:0xf bank_mask:0xf
    v_add_f32_dpp v26, v24, v26 quad_perm:[1,0,3,2] row_mask:0xf bank_mask:0xf
    v_add_f32_dpp v27, v25, v27 quad_perm:[1,0,3,2] row_mask:0xf bank_mask:0xf
    v_cndmask_b32 v20, v20, v26, s[66:67]
    v_cndmask_b32 v21, v21, v27, s[66:67]
    v_cvt_pk_bf16_f32 v22, v20, v21
    v_lshlrev_b32 v20, 16, v22
    v_and_b32 v21, s50, v22
    v_mul_f32 v20, s41, v20
    v_mul_f32 v21, s41, v21
    v_cvt_pk_bf16_f32 v22, v20, v21
    s_mov_b32 s41, {hex(f2u(1.4426950408889634))}
    v_lshlrev_b32 v20, 16, v22
    v_and_b32 v21, s50, v22
    v_mul_f32 v20, s41, v20
    v_mul_f32 v21, s41, v21
    v_mov_b32 v22, v20
    v_mov_b32 v23, v21
    """)
    wave_red("v_max_f32", [22, 23])
    a(f"""
    s_lshr_b32 s66, s2, 6
    s_bfe_u32 s67, s2, 0x40002
    v_readlane_b32 s52, v22, 63
    v_readlane_b32 s53, v23, 63
    s_lshl_b32 s67, s67, 2
    s_add_u32 s66, s66, s67
    s_and_b32 s67, s2, 3
    s_and_b32 s52, s52, s51
    s_and_b32 s53, s53, s51
    v_subrev_f32 v20, s52, v20
    v_subrev_f32 v21, s53, v21
    v_exp_f32 v20, v20
    v_exp_f32 v21, v21
    v_cvt_pk_bf16_f32 v22, v20, v20
    v_cvt_pk_bf16_f32 v23, v21, v21
    ds_write_b32 v19, v22 offset:{PL}
    ds_write_b32 v19, v23 offset:{PL+256}
    v_mov_b32 v30, s52
    v_mov_b32 v31, s53
    s_lshl_b32 s68, s3, 5
    """)
    wave_red("v_add_f32", [20, 21])
    a(f"""
    s_mov_b32 s52, 0xaaaaaaaa
    s_mov_b32 s53, 0xaaaaaaaa
    v_cndmask_b32 v24, v30, v31, s[52:53]
    v_cndmask_b32 v25, v20, v21, s[52:53]
    v_and_or_b32 v26, v24, s51, v10
    v_and_or_b32 v27, v25, s51, v11
    v_and_or_b32 v24, v24, s51, v8
    v_and_or_b32 v25, v25, s51, v9
    v_and_b32 v22, 16, v3
    v_add_u32 v22, s68, v22
    s_mov_b32 exec_lo, 0
    s_mov_b32 exec_hi, 0xc0000000
    ds_write_b128 v22, v[24:27] offset:{MX}
    s_mov_b64 exec, -1
    s_setprio 1
    """)
    stamp("qk")
    a("s_cmp_ge_u32 s2, 208"); a("s_cbranch_scc1 L_nov2")
    for t in range(NVA, 16):
        vload(t)
    a("s_setprio 0")
    a("buffer_load_dwordx4 v[248:251], v17, s[24:27], s64 offen sc1")
    a("buffer_load_dwordx4 v[252:255], v17, s[24:27], s38 offen sc1")
    s3load(0)
    a("s_branch L_nov3")
    a("L_nov2:")
    a("s_setprio 0")
    s3load(0); s3load(1)
    a("s_waitcnt vmcnt(8)")
    a("L_nov3:")
    stamp("allissued")
    a(f"""
    s_cmp_lg_u32 s3, 5
    s_cbranch_scc1 L_nofac
    v_and_b32 v22, 0xf0, v3
    v_bfe_u32 v23, v1, 1, 3
    v_and_b32 v24, 1, v1
    v_lshlrev_b32 v23, 2, v23
    v_lshl_add_u32 v23, v24, 5, v23
    s_lshl_b32 s39, s66, 7
    s_lshl_b32 s68, s67, 5
    s_add_u32 s39, s39, s68
    s_add_u32 s39, s39, {ST}
    L_stchk:
    ds_read_b128 v[244:247], v22 offset:{MX}
    s_waitcnt lgkmcnt(0)
    """)
    check(244, 24)
    a(f"""
    s_cbranch_vccz L_stok
    s_sub_u32 s65, s65, 1
    s_cbranch_scc0 L_stchk
    L_stok:
    v_and_b32 v244, s51, v244
    v_max_f32_dpp v24, v244, v244 row_ror:8 row_mask:0xf bank_mask:0xf
    v_max_f32_dpp v24, v24, v24 row_ror:4 row_mask:0xf bank_mask:0xf
    v_max_f32_dpp v24, v24, v24 row_ror:2 row_mask:0xf bank_mask:0xf
    v_sub_f32 v244, v244, v24
    v_exp_f32 v244, v244
    v_mul_f32 v25, v245, v244
    v_add_f32_dpp v25, v25, v25 row_ror:8 row_mask:0xf bank_mask:0xf
    v_add_f32_dpp v25, v25, v25 row_ror:4 row_mask:0xf bank_mask:0xf
    v_add_f32_dpp v25, v25, v25 row_ror:2 row_mask:0xf bank_mask:0xf
    s_mov_b64 exec, 0xffff
    ds_write_b32 v23, v244 offset:{LS}
    s_mov_b64 exec, -1
    v_and_or_b32 v246, v24, s51, v10
    v_and_or_b32 v247, v25, s51, v11
    v_and_or_b32 v244, v24, s51, v8
    v_and_or_b32 v245, v25, s51, v9
    L_nofac:
    """)
    a(f"""
    ds_read_b128 v[32:35], v16 offset:{PL}
    ds_read_b128 v[36:39], v16 offset:{PL+16}
    ds_read_b128 v[40:43], v16 offset:{PL+32}
    ds_read_b128 v[44:47], v16 offset:{PL+48}
    s_waitcnt lgkmcnt(0)
    """)
    def bbuild(t):
        b = 48 + 4 * (t % 3)
        for i in range(4): a(f"v_and_b32 v{b+i}, v{12+i}, v{32+t}")
    bbuild(0)
    for t in range(16):
        if t + 1 < 16: bbuild(t + 1)
        a(f"s_waitcnt vmcnt({15-t+6})")
        b = 48 + 4 * (t % 3)
        C = "0" if t == 0 else "v[60:63]"
        a(f"v_mfma_f32_16x16x32_bf16 v[60:63], v[{V0+4*t}:{V0+4*t+3}], v[{b}:{b+3}], {C}")
    stamp("pv")
    a("L_or:")
    a(f"""
    v_bfe_u32 v25, v1, 3, 1
    v_lshlrev_b32 v24, 11, v25
    v_lshlrev_b32 v25, 5, v25
    v_lshrrev_b32 v26, 4, v1
    v_lshl_add_u32 v24, v26, 7, v24
    v_and_b32 v26, 7, v1
    v_lshl_add_u32 v24, v26, 4, v24
    s_lshl_b32 s41, s66, 12
    s_lshl_b32 s68, s67, 9
    ds_write_b128 v18, v[60:63] offset:{OR}
    s_add_u32 s41, s41, s68
    s_add_u32 s41, s41, {OP}
    s_cmp_lg_u32 s3, 5
    s_cbranch_scc1 L_nost
    s_mov_b64 exec, 3
    buffer_store_dwordx4 v[244:247], v3, s[24:27], s39 offen sc1
    s_mov_b64 exec, -1
    """)
    stamp("stpub")
    a(f"""
    L_nost:
    s_waitcnt lgkmcnt(0)
    s_barrier
    s_cmp_lg_u32 s3, 6
    s_cbranch_scc1 L_s3go
    s_setprio 3
    ds_read_b128 v[32:35], v25 offset:{LS}
    ds_read_b128 v[36:39], v25 offset:{LS+16}
    """)
    R = K0
    red_sum(3, OR, R)
    for p in range(8):
        if p in (0, 2, 4, 6): a(f"s_waitcnt lgkmcnt({6-p})")
        for r in range(4):
            if p == 0: a(f"v_mul_f32 v{R+r}, v{R+r}, v32")
            else: a(f"v_fmac_f32 v{R+r}, v{R+4*p+r}, v{32+p}")
    tag(R)
    a(f"buffer_store_dwordx4 v[{R}:{R+3}], v24, s[24:27], s41 offen sc1")
    stamp("opub")
    if ssel and "opack" in ssel:
        a("s_waitcnt vmcnt(0)"); stamp("opack")
    a(f"""
    s_setprio 0
    L_s3go:
    s_cmp_lt_u32 s2, 46
    s_cbranch_scc1 L_final
    v_and_b32 v28, 3, v1
    v_mul_u32_u24 v28, {36*4096}, v28
    v_bfe_u32 v21, v1, 4, 1
    v_lshl_add_u32 v28, v21, 13, v28
    v_bfe_u32 v21, v1, 2, 1
    v_lshl_add_u32 v28, v21, 12, v28
    v_lshrrev_b32 v21, 5, v1
    v_lshl_add_u32 v28, v21, 5, v28
    v_bfe_u32 v21, v1, 3, 1
    v_lshl_add_u32 v28, v21, 4, v28
    s_add_u32 s40, s60, s3
    s_lshl_b32 s40, s40, 14
    s_lshl_b32 s66, s59, 6
    s_add_u32 s40, s40, s66
    s_add_u32 s40, s40, {FP}
    s_lshl_b32 s66, s3, 13
    v_add_u32 v29, s66, v3
    s_cmp_ge_u32 s2, 208
    s_cbranch_scc1 L_ctail
    s_waitcnt vmcnt(4)
    L_guchk:
    """)
    check(248, 22); check(252, 24, 52)
    a(f"""
    s_cbranch_vccz L_guok
    s_sub_u32 s65, s65, 1
    s_cbranch_scc1 L_guok
    buffer_load_dwordx4 v[248:251], v17, s[24:27], s64 offen sc1
    buffer_load_dwordx4 v[252:255], v17, s[24:27], s38 offen sc1
    s_waitcnt vmcnt(0)
    s_branch L_guchk
    L_guok:
    s_mov_b32 s41, {hex(f2u(2*0.7978845608028654*1.4426950408889634*0.044715))}
    v_mov_b32 v40, {hex(f2u(2*0.7978845608028654*1.4426950408889634))}
    """)
    for r in range(4): a(f"v_and_b32 v{32+r}, s50, v{248+r}")
    for r in range(4): a(f"v_mul_f32 v{36+r}, v{32+r}, v{32+r}")
    for r in range(4): a(f"v_fma_f32 v{36+r}, v{36+r}, s41, v40")
    for r in range(4): a(f"v_mul_f32 v{36+r}, v{36+r}, v{32+r}")
    for r in range(4): a(f"v_exp_f32 v{36+r}, -v{36+r}")
    for r in range(4): a(f"v_and_b32 v{252+r}, s50, v{252+r}")
    for r in range(4): a(f"v_add_f32 v{36+r}, 1.0, v{36+r}")
    for r in range(4): a(f"v_rcp_f32 v{36+r}, v{36+r}")
    for r in range(4): a(f"v_mul_f32 v{36+r}, v{36+r}, v{32+r}")
    a("""
    v_cvt_pk_bf16_f32 v32, v36, v37
    v_cvt_pk_bf16_f32 v33, v38, v39
    v_lshlrev_b32 v36, 16, v32
    v_and_b32 v37, s50, v32
    v_lshlrev_b32 v38, 16, v33
    v_and_b32 v39, s50, v33
    """)
    for r in range(4): a(f"v_mul_f32 v{36+r}, v{36+r}, v{252+r}")
    a("""
    v_cvt_pk_bf16_f32 v20, v36, v37
    v_cvt_pk_bf16_f32 v21, v38, v39
    """)
    def transp(src, dst):
        for e in range(8):
            i = e >> 1; sel = 55 + (e & 1)
            for jj in range(2):
                a(f"v_perm_b32 v{dst+2*e+jj}, v{src+4*(2*jj+1)+i}, v{src+4*(2*jj)+i}, s{sel}")
    def bmask():
        a("""
        v_cndmask_b32 v22, 0, v20, s[32:33]
        v_cndmask_b32 v23, 0, v21, s[32:33]
        v_cndmask_b32 v20, v20, 0, s[32:33]
        v_cndmask_b32 v21, v21, 0, s[32:33]
        """)
    accs = [ACC, ACC + 16, K0 + 48]
    def mm(blk):
        for u in range(2):
            for p in range(4):
                e = 2 * p + u
                t = K0 + 16 * blk + 2 * e; d = accs[blk] + 4 * p
                C = "0" if u == 0 else f"v[{d}:{d+3}]"
                a(f"v_mfma_f32_16x16x16_bf16 v[{d}:{d+3}], v[{t}:{t+1}], v[{20+2*u}:{21+2*u}], {C}")
    bmask()
    a("""
    s_mov_b32 s34, 1
    s_sub_u32 s41, s3, 5
    s_cmp_lt_u32 s41, 2
    s_cbranch_scc1 L_dn0
    s_waitcnt vmcnt(0)
    L_dn0:
    s_waitcnt vmcnt(1)
    """)
    stamp("s3data")
    transp(S3B[0], K0)
    mm(0)
    dense(accs[0])
    a(f"ds_write_b128 v18, v[{accs[0]}:{accs[0]+3}] offset:{RED}")
    a("s_branch L_s3red")
    a(f"""
    L_ctail:
    s_lshl_b32 s66, s62, 14
    s_lshr_b32 s41, s3, 2
    s_lshl_b32 s67, s41, 11
    s_add_u32 s66, s66, s67
    s_and_b32 s67, s3, 3
    s_lshl_b32 s67, s67, 7
    s_add_u32 s66, s66, s67
    s_add_u32 s66, s66, {OP}
    s_mov_b32 s65, {spin}
    s_mov_b32 s34, 3
    """)
    s3load(2)
    a("s_waitcnt vmcnt(0)")
    transp(S3B[0], K0); transp(S3B[1], K0 + 16); transp(S3B[2], K0 + 32)
    stamp("cready")
    a(f"""
    s_lshl_b32 s67, s62, 9
    s_lshr_b32 s41, s3, 2
    s_lshl_b32 s41, s41, 4
    s_add_u32 s67, s67, s41
    s_add_u32 s67, s67, {ST}
    v_and_b32 v19, 3, v1
    v_lshlrev_b32 v19, 7, v19
    v_bfe_u32 v20, v1, 2, 2
    v_lshl_add_u32 v19, v20, 5, v19
    v_lshl_add_u32 v16, v20, 9, v7
    v_xor_b32 v17, 0x200, v16
    L_schk:
    buffer_load_dwordx4 v[32:35], v19, s[24:27], s67 offen sc1
    s_waitcnt vmcnt(0)
    """)
    check(32, 20)
    a(f"""
    s_cbranch_vccz L_sok
    s_sub_u32 s65, s65, 1
    s_cbranch_scc0 L_schk
    L_sok:
    buffer_load_dwordx4 v[36:39], v16, s[24:27], s66 offen sc1
    buffer_load_dwordx4 v[40:43], v17, s[24:27], s66 offen sc1
    v_and_b32 v32, s51, v32
    v_max_f32_dpp v24, v32, v32 row_ror:8 row_mask:0xf bank_mask:0xf
    v_max_f32_dpp v24, v24, v24 row_ror:4 row_mask:0xf bank_mask:0xf
    v_sub_f32 v24, v32, v24
    v_exp_f32 v24, v24
    v_mul_f32 v25, v24, v33
    v_add_f32_dpp v25, v25, v25 row_ror:8 row_mask:0xf bank_mask:0xf
    v_add_f32_dpp v25, v25, v25 row_ror:4 row_mask:0xf bank_mask:0xf
    v_rcp_f32 v25, v25
    v_mul_f32 v24, v24, v25
    v_mov_b32_dpp v25, v24 row_shl:4 row_mask:0xf bank_mask:0x5
    v_mov_b32_dpp v25, v24 row_shr:4 row_mask:0xf bank_mask:0xa
    """)
    stamp("sok")
    a("""
    L_ochk:
    s_waitcnt vmcnt(0)
    """)
    check(36, 20); check(40, 22, 52)
    a("""
    s_cbranch_vccz L_ook
    buffer_load_dwordx4 v[36:39], v16, s[24:27], s66 offen sc1
    buffer_load_dwordx4 v[40:43], v17, s[24:27], s66 offen sc1
    s_sub_u32 s65, s65, 1
    s_cbranch_scc0 L_ochk
    L_ook:
    """)
    for r in range(4): a(f"v_mul_f32 v{32+r}, v24, v{36+r}")
    for r in range(4): a(f"v_fmac_f32 v{32+r}, v25, v{40+r}")
    for r in range(4): a(f"v_add_f32_dpp v{32+r}, v{32+r}, v{32+r} row_ror:8 row_mask:0xf bank_mask:0xf")
    stamp("ook")
    a("""
    v_cvt_pk_bf16_f32 v20, v32, v33
    v_cvt_pk_bf16_f32 v21, v34, v35
    """)
    bmask()
    mm(0); mm(1); mm(2)
    for blk in range(3):
        dense(accs[blk])
        a(f"ds_write_b128 v18, v[{accs[blk]}:{accs[blk]+3}] offset:{RED+blk*8192}")
    a(f"""
    L_s3red:
    s_waitcnt lgkmcnt(0)
    s_barrier
    s_cmp_ge_u32 s3, s34
    s_cbranch_scc1 L_fin
    """)
    R = ACC
    red_sum(29, RED, R); red_add(R); tag(R)
    a(f"buffer_store_dwordx4 v[{R}:{R+3}], v28, s[24:27], s40 offen sc1")
    stamp("s3pub")
    a("s_branch L_fin")
    a(f"""
    L_final:
    s_cmp_ge_u32 s2, 36
    s_cbranch_scc1 L_epoch
    s_cmp_ge_u32 s3, 4
    s_cbranch_scc1 L_fin
    s_mul_i32 s66, s2, 57
    s_lshr_b32 s66, s66, 9
    s_mul_i32 s67, s66, 9
    s_sub_u32 s67, s2, s67
    s_mul_i32 s66, s66, 1152
    s_lshl_b32 s67, s67, 7
    s_add_u32 s66, s66, s67
    s_lshr_b32 s67, s3, 1
    s_lshl_b32 s67, s67, 6
    s_add_u32 s66, s66, s67
    s_and_b32 s67, s3, 1
    s_lshl_b32 s67, s67, 3
    s_add_u32 s66, s66, s67
    v_and_b32 v20, 3, v1
    v_lshlrev_b32 v21, 4, v20
    v_lshrrev_b32 v22, 4, v1
    v_lshl_add_u32 v21, v22, 1, v21
    buffer_load_ushort v19, v21, s[4:7], s66 offen
    v_and_b32 v23, 15, v1
    v_lshlrev_b32 v24, 6, v23
    v_lshl_add_u32 v24, v22, 4, v24
    v_and_b32 v25, 1, v1
    v_lshlrev_b32 v25, 6, v25
    v_lshl_add_u32 v25, v22, 4, v25
    s_lshl_b32 s67, s2, 2
    s_add_u32 s67, s67, s3
    s_lshl_b32 s67, s67, 12
    s_add_u32 s67, s67, {FP}
    v_cmp_gt_u32 s[60:61], 2, v23
    v_cmp_eq_u32 s[62:63], 1, v20
    v_cmp_eq_u32 s[44:45], 2, v20
    v_cmp_eq_u32 s[46:47], 3, v20
    s_mov_b32 s65, {spin}
    """)
    def fload(P):
        a(f"buffer_load_dwordx4 v[{P}:{P+3}], v24, s[24:27], s67 offen sc1")
        a(f"buffer_load_dwordx4 v[{P+4}:{P+7}], v24, s[24:27], s67 offen offset:1024 sc1")
        a(f"buffer_load_dwordx4 v[{P+8}:{P+11}], v25, s[24:27], s67 offen offset:2048 sc1")
    def fcheck(P):
        check(P, 26); check(P + 4, 28, 52); check(P + 8, 26, 52)
    def fcomb(P):
        for r in range(4): a(f"v_cndmask_b32 v{40+r}, 0, v{P+8+r}, s[60:61]")
        for r in range(4): a(f"v_add_f32_dpp v{32+r}, v{P+r}, v{P+r} row_ror:8 row_mask:0xf bank_mask:0xf")
        for r in range(4): a(f"v_add_f32 v{36+r}, v{P+4+r}, v{40+r}")
    PA = V0
    a("L_fchk:")
    fload(PA)
    a("s_waitcnt vmcnt(0)")
    fcheck(PA)
    a("s_cbranch_vccz L_fok")
    a("s_sub_u32 s65, s65, 1"); a("s_cbranch_scc0 L_fchk")
    a("L_fok:")
    fcomb(PA)
    stamp("fok")
    for r in range(4): a(f"v_add_f32_dpp v{36+r}, v{36+r}, v{36+r} row_ror:8 row_mask:0xf bank_mask:0xf")
    for m in ("row_ror:4", "row_ror:2", "row_ror:1"):
        for r in range(8): a(f"v_add_f32_dpp v{32+r}, v{32+r}, v{32+r} {m} row_mask:0xf bank_mask:0xf")
    a(f"""
    v_cndmask_b32 v36, v36, v37, s[62:63]
    v_cndmask_b32 v32, v32, v33, s[62:63]
    v_cndmask_b32 v36, v36, v38, s[44:45]
    v_cndmask_b32 v32, v32, v34, s[44:45]
    v_cndmask_b32 v36, v36, v39, s[46:47]
    v_cndmask_b32 v32, v32, v35, s[46:47]
    v_cvt_pk_bf16_f32 v32, v32, v36
    v_and_b32 v36, s50, v32
    v_lshlrev_b32 v32, 16, v32
    v_mul_f32 v33, {hex(f2u(-1.4426950408889634))}, v36
    v_exp_f32 v33, v33
    v_lshlrev_b32 v18, 16, v19
    v_add_f32 v33, 1.0, v33
    v_rcp_f32 v33, v33
    v_cmp_gt_u32 vcc, 4, v23
    v_mul_f32 v33, v33, v36
    v_cvt_pk_bf16_f32 v33, v33, v33
    v_and_b32 v33, s50, v33
    v_mul_f32 v32, v32, v33
    v_cvt_pk_bf16_f32 v32, v32, v32
    v_and_b32 v32, s50, v32
    v_add_f32 v32, v32, v18
    v_cvt_pk_bf16_f32 v32, v32, v32
    s_mov_b64 exec, vcc
    buffer_store_short v32, v21, s[28:31], s66 offen
    s_mov_b64 exec, -1
    s_branch L_fin
    L_epoch:
    s_cmp_lg_u32 s2, 45
    s_cbranch_scc1 L_fin
    s_cmp_lg_u32 s3, 5
    s_cbranch_scc1 L_fin
    v_mov_b32 v20, 0
    v_lshlrev_b32 v24, 5, v1
    s_mov_b32 s65, {spin}
    s_mov_b32 s44, {ST}
    s_mov_b32 s45, {ST+2048}
    s_mov_b32 s46, {ST+4096}
    s_mov_b32 s47, {ST+6144}
    L_echk:
    """)
    for p in range(4): a(f"buffer_load_dwordx4 v[{32+4*p}:{35+4*p}], v24, s[24:27], s{44+p} offen sc1")
    a("s_waitcnt vmcnt(0)")
    check(32, 26)
    for p in range(1, 4): check(32 + 4 * p, 26, 52)
    a(f"""
    s_cbranch_vccz L_eok
    s_sleep 8
    s_sub_u32 s65, s65, 1
    s_cbranch_scc0 L_echk
    L_eok:
    v_mov_b32 v21, s48
    s_mov_b64 exec, 1
    buffer_store_dword v21, v20, s[24:27], 0 offen sc1
    s_mov_b64 exec, -1
    L_fin:
    """)
    if exfil:
        a(f"s_cmp_lg_u32 s3, {exfil[2]}"); a("s_cbranch_scc1 L_end")
        a(f"s_cmp_lg_u32 s2, {exfil[1]}"); a("s_cbranch_scc1 L_end")
        a("s_waitcnt vmcnt(0)")
        a("s_memrealtime s[100:101]")
        a("s_waitcnt lgkmcnt(0)")
        if exfil[0] == "end": a("s_mov_b32 s96, s100")
        a("s_sub_u32 s96, s96, s98"); a("s_lshl_b32 s96, s96, 2"); a("s_min_u32 s96, s96, 50000")
        a("L_xf:"); a("s_memrealtime s[94:95]"); a("s_waitcnt lgkmcnt(0)"); a("s_sub_u32 s94, s94, s100"); a("s_cmp_lt_u32 s94, s96"); a("s_cbranch_scc1 L_xf")
    if diag:
        if clk: stamp("clk1", "s_memtime")
        stamp("end")
        a("s_waitcnt lgkmcnt(0)")
        a("s_lshl_b32 s41, s2, 3"); a("s_add_u32 s41, s41, s3"); a("s_lshl_b32 s41, s41, 7"); a(f"s_add_u32 s41, s41, {TS_OFF}")
        a("v_mov_b32 v20, 0")
        for k in range(16):
            a(f"v_mov_b32 v22, s{70+2*k}"); a(f"v_mov_b32 v23, s{71+2*k}")
            a(f"buffer_store_dwordx2 v[22:23], v20, s[24:27], s41 offen offset:{k*8}")
    a("L_end:"); a("s_endpgm"); a("L_codeend:")
    a('.section .rodata,"a"'); a(".p2align 6"); a(f".amdhsa_kernel {NAME}_kernel")
    a("  .amdhsa_next_free_vgpr 256"); a("  .amdhsa_next_free_sgpr 102"); a("  .amdhsa_accum_offset 256")
    a("  .amdhsa_group_segment_fixed_size 0"); a("  .amdhsa_kernarg_size 96"); a("  .amdhsa_user_sgpr_count 2")
    a("  .amdhsa_user_sgpr_kernarg_segment_ptr 1"); a("  .amdhsa_system_sgpr_workgroup_id_x 1"); a(".end_amdhsa_kernel")
    return a.finalize(), ts
if __name__ == "__main__":
    open("k.s", "w").write(gen()[0])
    import sys
    sets = {"a": ["start","ln","kaiss","s1data","s1mf","s1bar","s1red","s1pub","kbiss","vissued","qok","qkmf","qk","allissued","end"],
            "c": ["start","allissued","stpub","pv","opub","opack","s3data","cready","sok","ook","s3pub","fok","end"],
            "b": ["start","s1pub","kbiss","vissued","qok","qk","allissued","pv","opub","s3data","sok","ook","s3pub","fok","end"]}
    for k, v in sets.items():
        txt, ts = gen(diag=True, ssel=v)
        open(f"kd{k}.s", "w").write(txt); open(f"kd{k}.s.names", "w").write(",".join(ts))
```

```python
import sys, struct
from asmlib import Asm
NAME = "recurrent_scan__sliding_block_cached__geglu_ffn__decode"
def f2u(x): return struct.unpack("<I", struct.pack("<f", x))[0]

Y1 = 0x1000
OP = 0x40000
ST = 0x80000
FP = 0x90000
WS_USED = 0x120000
TS_OFF = 0x10000000
XSTR = 1168
XN = 0
QL = 4736
PL = QL + 4096
HB = PL + 4096
MX = HB + 2048
LS = MX + 256
OR = LS + 64
RED = OR + 8192
LDS_SIZE = RED + 3 * 8192
assert OR % 16 == 0 and RED % 16 == 0 and QL % 16 == 0
DROP = 0x40000000

def gen(xl=0, ssel=None, b3=False, pref=True, psleep=0, fsleep=0, exfil=None, diag=False, clk=False, NKA=6, NKA0=2, NVA=6, spin=20000, ntw="nt", ntkv="nt"):
    a = Asm()
    a(f"; @launch grid=(256,1,1) block=(512,1,1) lds={LDS_SIZE}")
    a('.amdgcn_target "amdgcn-amd-amdhsa--gfx950"')
    a(".text"); a(f".globl {NAME}_kernel"); a(".p2align 8"); a(f".type {NAME}_kernel,@function"); a(f"{NAME}_kernel:")
    ts = []
    def stamp(name, op="s_memrealtime"):
        if exfil and name == exfil[0]: a("s_memrealtime s[96:97]")
        if exfil and name == "start": a("s_memrealtime s[98:99]")
        if not diag: return
        if ssel is not None and name not in ssel: return
        s = 70 + 2 * len(ts); assert s + 1 <= 101
        ts.append(name); a(f"{op} s[{s}:{s+1}]")
    if diag:
        for s in range(70, 102): a(f"s_mov_b32 s{s}, 0")
    stamp("start")
    if clk: stamp("clk0", "s_memtime")
    K0, V0, W0, ACC = 64, 128, 192, 32
    a(f"""
    s_cmp_ge_u32 s2, 256
    s_cbranch_scc1 L_end
    s_load_dwordx2 s[4:5], s[0:1], 0
    s_load_dwordx2 s[8:9], s[0:1], 8
    s_load_dwordx2 s[24:25], s[0:1], 88
    s_mov_b32 s37, 8192
    s_mov_b32 s18, 4718592
    s_cmp_ge_u32 s2, 64
    s_cselect_b32 s36, 48, 24
    s_cselect_b32 s37, 9216, s37
    s_cselect_b32 s18, 5308416, s18
    s_cselect_b32 s38, 64, 0
    s_cmp_ge_u32 s2, 136
    s_cselect_b32 s36, 56, s36
    s_cselect_b32 s38, 136, s38
    s_load_dwordx2 s[16:17], s[0:1], s36
    v_lshrrev_b32 v20, 6, v0
    v_and_b32 v1, 63, v0
    s_mov_b32 s6, 4608
    v_readfirstlane_b32 s3, v20
    s_mov_b32 s7, 0x20000
    s_mov_b32 s10, 0x8000000
    s_mov_b32 s11, 0x20000
    s_mov_b32 s19, 0x20000
    s_mov_b32 s26, {0x20000000 if diag else WS_USED}
    s_mov_b32 s27, 0x20000
    v_lshrrev_b32 v20, 4, v1
    v_bfe_u32 v21, v1, 3, 1
    v_lshl_add_u32 v21, v21, 2, v20
    v_and_b32 v22, 7, v1
    v_lshlrev_b32 v22, 4, v22
    v_mad_u32_u24 v5, v21, s37, v22
    s_lshl_b32 s40, s37, 3
    v_mad_u32_u24 v4, v21, s40, v22
    v_mul_u32_u24 v6, 1152, v21
    v_add_u32 v6, v6, v22
    v_lshlrev_b32 v3, 4, v1
    v_bfe_u32 v2, v1, 1, 3
    v_lshlrev_b32 v2, 8, v2
    v_lshl_add_u32 v2, v20, 5, v2
    v_and_b32 v22, 1, v1
    v_lshl_add_u32 v2, v22, 4, v2
    s_and_b32 s41, s3, 3
    s_mul_i32 s41, s41, 1152
    v_add_u32 v7, s41, v3
    v_mov_b32 v22, 0x100000
    v_cmp_gt_u32 vcc, 36, v1
    v_cndmask_b32 v7, v22, v7, vcc
    s_sub_u32 s42, s2, s38
    s_lshl_b32 s42, s42, 7
    s_mul_i32 s44, s3, s40
    s_lshl_b32 s43, s37, 9
    s_add_u32 s43, s43, s44
    s_add_u32 s43, s43, s42
    s_lshl_b32 s44, s44, 3
    s_add_u32 s42, s42, s44
    """)
    if xl:
        a("""
        s_and_b32 s69, s2, 7
        s_lshl_b32 s69, s69, 3
        s_lshr_b32 s44, s2, 7
        s_lshl_b32 s44, s44, 2
        s_add_u32 s69, s69, s44
        s_bfe_u32 s44, s2, 0x20003
        s_add_u32 s69, s69, s44
        s_bfe_u32 s44, s2, 0x20005
        s_lshl_b32 s44, s44, 6
        s_add_u32 s69, s69, s44
        """)
    else: a("s_mov_b32 s69, s2")
    a(f"""
    s_lshr_b32 s44, s69, 2
    s_lshl_b32 s44, s44, 21
    s_and_b32 s45, s69, 3
    s_lshl_b32 s45, s45, 17
    s_add_u32 s44, s44, s45
    s_lshl_b32 s45, s3, 14
    s_add_u32 s44, s44, s45
    s_add_u32 s44, s44, 0x180000
    s_add_u32 s45, s44, 4096
    s_add_u32 s46, s44, 8192
    s_add_u32 s47, s44, 12288
    s_cmp_ge_u32 s2, 208
    s_cselect_b32 s39, 32, 64
    s_waitcnt lgkmcnt(0)
    """)
    def kload(i):
        G, ip = i >> 1, i & 1
        a(f"buffer_load_dwordx4 v[{K0+4*i}:{K0+4*i+3}], v2, s[8:11], s{44+(G>>1)} offen offset:{(G&1)*2048+ip*128} {ntkv}")
    def vload(t):
        a(f"buffer_load_dwordx4 v[{V0+4*t}:{V0+4*t+3}], v3, s[12:15], s{44+(t>>2)} offen offset:{(t&3)*1024} {ntkv}")
    S3B = [W0 + 36, W0, W0 + 16]
    def s3load(blk):
        base = S3B[blk]
        for j in range(4):
            a(f"buffer_load_dwordx4 v[{base+4*j}:{base+4*j+3}], v6, s[20:23], s{(61,35,36,37)[j]} offen offset:{blk*128} {ntw}")
    def second_batch():
        a("""
        s_load_dwordx2 s[12:13], s[0:1], 16
        s_load_dwordx2 s[20:21], s[0:1], s39
        s_load_dwordx2 s[28:29], s[0:1], 72
        s_load_dword s48, s[24:25], 0
        """)
    def wave_red(op, rs):
        for m in ("row_ror:8 row_mask:0xf", "row_ror:4 row_mask:0xf", "row_ror:2 row_mask:0xf", "row_ror:1 row_mask:0xf",
                  "row_bcast:15 row_mask:0xa", "row_bcast:31 row_mask:0xc"):
            for r in rs: a(f"{op}_dpp v{r}, v{r}, v{r} {m} bank_mask:0xf")
    def common_setup():
        a(f"""
        s_add_u32 s48, s48, 0x01010101
        s_mov_b32 s50, 0xffff0000
        s_mov_b32 s51, 0xffffff00
        s_mov_b32 s55, 0x05040100
        s_mov_b32 s56, 0x07060302
        s_mov_b32 s57, 0x0c0c0400
        s_mov_b32 s58, 0x04000c0c
        s_mov_b32 s14, 0x8000000
        s_mov_b32 s15, 0x20000
        s_mov_b32 s23, 0x20000
        s_mov_b32 s30, 4608
        s_mov_b32 s31, 0x20000
        s_mov_b32 s32, 0xff00ff00
        s_mov_b32 s33, 0xff00ff00
        s_and_b32 s41, s48, 0xff
        v_mov_b32 v8, s41
        s_bfe_u32 s41, s48, 0x80008
        v_mov_b32 v9, s41
        s_bfe_u32 s41, s48, 0x80010
        v_mov_b32 v10, s41
        s_lshr_b32 s41, s48, 24
        v_mov_b32 v11, s41
        """)
    def lds_clear():
        a(f"""
        s_not_b32 s41, s48
        s_sub_u32 s41, s41, 0x01010101
        v_mov_b32 v19, s41
        s_lshl_b32 s41, s3, 10
        v_add_u32 v18, s41, v3
        v_and_b32 v29, 0xf0, v3
        ds_write_b32 v18, v19 offset:{RED}
        ds_write_b32 v29, v19 offset:{MX}
        s_waitcnt lgkmcnt(0)
        """)
    def dense(acc):
        for r in range(4): a(f"v_permlane32_swap_b32 v{acc+r}, v{acc+4+r}")
        for r in range(4): a(f"v_permlane32_swap_b32 v{acc+8+r}, v{acc+12+r}")
        for r in range(4): a(f"v_add_f32_dpp v{acc+r}, v{acc+4+r}, v{acc+r} row_shl:4 row_mask:0xf bank_mask:0x5")
        for r in range(4): a(f"v_add_f32_dpp v{acc+r}, v{acc+8+r}, v{acc+12+r} row_shr:4 row_mask:0xf bank_mask:0xa")
    def red_sum(vaddr, base, R):
        for p in range(8): a(f"ds_read_b128 v[{R+4*p}:{R+4*p+3}], v{vaddr} offset:{base+p*1024}")
    def red_add(R):
        a("s_waitcnt lgkmcnt(4)")
        for p in range(1, 8):
            if p == 4: a("s_waitcnt lgkmcnt(0)")
            a(f"v_pk_add_f32 v[{R}:{R+1}], v[{R}:{R+1}], v[{R+4*p}:{R+4*p+1}]")
            a(f"v_pk_add_f32 v[{R+2}:{R+3}], v[{R+2}:{R+3}], v[{R+4*p+2}:{R+4*p+3}]")
    def tag(R):
        for i in range(4): a(f"v_and_or_b32 v{R+i}, v{R+i}, s51, v{8+i}")
    def check(R, t0, acc=None):
        a(f"v_perm_b32 v{t0}, v{R+1}, v{R}, s57")
        a(f"v_perm_b32 v{t0+1}, v{R+3}, v{R+2}, s58")
        a(f"v_or_b32 v{t0}, v{t0}, v{t0+1}")
        if acc is None: a(f"v_cmp_ne_u32 vcc, s48, v{t0}")
        else:
            a(f"v_cmp_ne_u32 s[{acc}:{acc+1}], s48, v{t0}")
            a(f"s_or_b64 vcc, vcc, s[{acc}:{acc+1}]")

    a("s_setprio 3")
    a("s_cbranch_scc1 L_c_start")
    a("s_cmp_ge_u32 s3, 4"); a("s_cbranch_scc1 L_nox")
    a(f"buffer_load_dwordx4 v[{V0}:{V0+3}], v7, s[4:7], 0 offen")
    a(f"buffer_load_dwordx4 v[{V0+4}:{V0+7}], v7, s[4:7], 0 offen offset:576")
    a("L_nox:")
    for j in range(8):
        a(f"buffer_load_dwordx4 v[{W0+4*j}:{W0+4*j+3}], v4, s[16:19], s42 offen {ntw}")
        if j < 7: a("s_add_u32 s42, s42, s37")
        if j == 1: second_batch()
    a(f"buffer_load_dwordx4 v[{W0+32}:{W0+35}], v5, s[16:19], s43 offen {ntw}")
    a("s_setprio 0")
    a("s_cmp_ge_u32 s3, 4"); a("s_cbranch_scc1 L_noln")
    X = V0; F = V0 + 8; T = V0 + 24; D = V0 + 26
    a("s_waitcnt vmcnt(9)")
    a("s_mov_b32 s50, 0xffff0000")
    for i in range(8):
        a(f"v_lshlrev_b32 v{F+2*i}, 16, v{X+i}")
        a(f"v_and_b32 v{F+2*i+1}, s50, v{X+i}")
    a(f"v_pk_add_f32 v[{T}:{T+1}], v[{F}:{F+1}], v[{F+2}:{F+3}]")
    for i in range(2, 8): a(f"v_pk_add_f32 v[{T}:{T+1}], v[{T}:{T+1}], v[{F+2*i}:{F+2*i+1}]")
    a(f"v_add_f32 v{T}, v{T}, v{T+1}")
    wave_red("v_add_f32", [T])
    a(f"v_mul_f32 v{T}, {hex(f2u(1/576))}, v{T}")
    a(f"v_readlane_b32 s52, v{T}, 63")
    a("s_mov_b32 s53, s52")
    for i in range(8):
        a(f"v_pk_add_f32 v[{D}:{D+1}], v[{F+2*i}:{F+2*i+1}], s[52:53] neg_lo:[0,1] neg_hi:[0,1]")
        if i == 0: a(f"v_pk_mul_f32 v[{T}:{T+1}], v[{D}:{D+1}], v[{D}:{D+1}]")
        else: a(f"v_pk_fma_f32 v[{T}:{T+1}], v[{D}:{D+1}], v[{D}:{D+1}], v[{T}:{T+1}]")
    a(f"v_add_f32 v{T}, v{T}, v{T+1}")
    a(f"v_cndmask_b32 v{T}, 0, v{T}, vcc")
    wave_red("v_add_f32", [T])
    a(f"""
    v_mul_f32 v{T}, {hex(f2u(1/576))}, v{T}
    v_readlane_b32 s54, v{T}, 63
    v_mov_b32 v{T}, s52
    v_mov_b32 v{T+1}, s54
    v_cvt_pk_bf16_f32 v{T}, v{T}, v{T+1}
    v_and_b32 v{T+1}, s50, v{T}
    v_lshlrev_b32 v{D}, 16, v{T}
    v_mov_b32 v{D+1}, v{D}
    v_add_f32 v{T+1}, {hex(f2u(1e-5))}, v{T+1}
    v_cvt_pk_bf16_f32 v{T+1}, v{T+1}, v{T+1}
    v_and_b32 v{T+1}, s50, v{T+1}
    v_sqrt_f32 v{T+1}, v{T+1}
    v_cvt_pk_bf16_f32 v{T+1}, v{T+1}, v{T+1}
    v_and_b32 v{T+1}, s50, v{T+1}
    v_rcp_f32 v{T}, v{T+1}
    v_mov_b32 v{T+1}, v{T}
    """)
    for i in range(8):
        a(f"v_pk_add_f32 v[{F+2*i}:{F+2*i+1}], v[{F+2*i}:{F+2*i+1}], v[{D}:{D+1}] neg_lo:[0,1] neg_hi:[0,1]")
    for i in range(8): a(f"v_cvt_pk_bf16_f32 v{X+i}, v{F+2*i}, v{F+2*i+1}")
    for i in range(8):
        a(f"v_lshlrev_b32 v{F+2*i}, 16, v{X+i}")
        a(f"v_and_b32 v{F+2*i+1}, s50, v{X+i}")
    for i in range(8): a(f"v_pk_mul_f32 v[{F+2*i}:{F+2*i+1}], v[{F+2*i}:{F+2*i+1}], v[{T}:{T+1}]")
    for i in range(8): a(f"v_cvt_pk_bf16_f32 v{X+i}, v{F+2*i}, v{F+2*i+1}")
    a(f"""
    s_and_b32 s41, s3, 3
    s_mul_i32 s41, s41, {XSTR}
    v_add_u32 v20, s41, v3
    s_mov_b32 exec_hi, 0xf
    ds_write_b128 v20, v[{X}:{X+3}] offset:{XN}
    ds_write_b128 v20, v[{X+4}:{X+7}] offset:{XN+576}
    s_mov_b64 exec, -1
    L_noln:
    v_and_b32 v20, 3, v1
    v_mul_u32_u24 v20, {XSTR}, v20
    v_bfe_u32 v21, v1, 2, 1
    v_lshrrev_b32 v22, 4, v1
    v_lshl_add_u32 v21, v21, 2, v22
    s_lshl_b32 s41, s3, 7
    v_lshl_add_u32 v22, v21, 4, v20
    v_add_u32 v22, s41, v22
    s_lshl_b32 s41, s3, 4
    v_lshl_add_u32 v23, v21, 1, v20
    v_add_u32 v23, s41, v23
    s_waitcnt lgkmcnt(0)
    """)
    lds_clear()
    stamp("ln")
    a(f"""
    s_barrier
    ds_read_b128 v[24:27], v22 offset:{XN}
    ds_read_u16 v28, v23 offset:{XN+1024}
    s_setprio 3
    """)
    for i in range(NKA0): kload(i)
    a("s_cmp_lt_u32 s2, 64"); a("s_cbranch_scc1 L_noka")
    for i in range(NKA0, NKA): kload(i)
    a("L_noka:")
    a("s_setprio 0")
    stamp("kaiss")
    common_setup()
    B2 = V0 + 8; BU = V0
    a("s_waitcnt lgkmcnt(0)")
    for r in range(4):
        a(f"v_cndmask_b32 v{BU+r}, v{24+r}, 0, s[32:33]")
        a(f"v_cndmask_b32 v{BU+4+r}, 0, v{24+r}, s[32:33]")
    a(f"""
    v_lshlrev_b32 v29, 16, v28
    v_cndmask_b32 v{B2}, v28, 0, s[32:33]
    v_mov_b32 v{B2+1}, 0
    v_cndmask_b32 v{B2+2}, 0, v29, s[32:33]
    v_mov_b32 v{B2+3}, 0
    v_mov_b32 v{B2+4}, 0
    v_mov_b32 v{B2+5}, v{B2}
    v_mov_b32 v{B2+6}, 0
    v_mov_b32 v{B2+7}, v{B2+2}
    s_cmp_ge_u32 s2, 64
    s_cbranch_scc1 L_s1w
    s_waitcnt vmcnt({NKA0})
    L_s1w:
    s_waitcnt vmcnt({NKA})
    """)
    stamp("s1data")
    for e in range(8):
        p = W0 + 32 + 2 * (e >> 2); bb = B2 + 2 * (e & 3); d = ACC + 4 * ((e >> 1))
        if e & 1 == 0: a(f"v_mfma_f32_16x16x16_bf16 v[{d}:{d+3}], v[{p}:{p+1}], v[{bb}:{bb+1}], 0")
    for e in range(8):
        p = W0 + 32 + 2 * (e >> 2); bb = B2 + 2 * (e & 3); d = ACC + 4 * ((e >> 1))
        if e & 1 == 1: a(f"v_mfma_f32_16x16x16_bf16 v[{d}:{d+3}], v[{p}:{p+1}], v[{bb}:{bb+1}], v[{d}:{d+3}]")
    TQ = V0 + 16
    order = [0, 2, 4, 6, 1, 3, 5, 7]
    def s1mf(e):
        t = TQ + 4 * e; d = ACC + 4 * (e >> 1); b = BU + 4 * (e & 1)
        a(f"v_mfma_f32_16x16x32_bf16 v[{d}:{d+3}], v[{t}:{t+3}], v[{b}:{b+3}], v[{d}:{d+3}]")
    for n, e in enumerate(order):
        i = e >> 1; sel = 55 + (e & 1); t = TQ + 4 * e
        for jj in range(4):
            a(f"v_perm_b32 v{t+jj}, v{W0+4*(2*jj+1)+i}, v{W0+4*(2*jj)+i}, s{sel}")
        if n >= 1: s1mf(order[n - 1])
    s1mf(order[7])
    a(f"""
    v_and_b32 v5, 3, v1
    v_lshlrev_b32 v5, 8, v5
    v_bfe_u32 v21, v1, 4, 1
    v_lshl_add_u32 v5, v21, 7, v5
    v_bfe_u32 v21, v1, 2, 1
    v_lshl_add_u32 v5, v21, 6, v5
    v_lshrrev_b32 v21, 5, v1
    v_lshl_add_u32 v5, v21, 5, v5
    v_bfe_u32 v21, v1, 3, 1
    v_lshl_add_u32 v5, v21, 4, v5
    """)
    dense(ACC)
    tag(ACC)
    a(f"ds_write_b128 v18, v[{ACC}:{ACC+3}] offset:{RED}")
    stamp("s1mf")
    def s1publish(n):
        R = ACC
        stamp("s1in" + n)
        a("s_setprio 3")
        a(f"s_lshl_b32 s41, s2, 10"); a(f"s_add_u32 s41, s41, {Y1}")
        a(f"s_mov_b32 s65, {spin}")
        a(f"L_s1chk{n}:")
        red_sum(3, RED, R)
        a("s_waitcnt lgkmcnt(0)")
        check(R, 22)
        for p in range(1, 8): check(R + 4 * p, 22, 52)
        a(f"""
        s_cbranch_vccz L_s1ok{n}
        s_sub_u32 s65, s65, 1
        s_cbranch_scc0 L_s1chk{n}
        L_s1ok{n}:
        """)
        stamp("s1ok" + n)
        red_add(R)
        a(f"""
        v_cvt_pk_bf16_f32 v{R+4}, v{R}, v{R+1}
        v_cvt_pk_bf16_f32 v{R+5}, v{R+2}, v{R+3}
        v_lshl_or_b32 v{R}, v{R+4}, 16, v8
        v_and_or_b32 v{R+1}, v{R+4}, s50, v9
        v_lshl_or_b32 v{R+2}, v{R+5}, 16, v10
        v_and_or_b32 v{R+3}, v{R+5}, s50, v11
        buffer_store_dwordx4 v[{R}:{R+3}], v5, s[24:27], s41 offen sc1
        """)
        stamp("s1pub" + n)
    a("s_setprio 3")
    a("s_cmp_ge_u32 s2, 64"); a("s_cbranch_scc1 L_kb")
    a("s_cmp_lg_u32 s3, 7"); a("s_cbranch_scc1 L_s1done")
    s1publish("")
    a("L_s1done:")
    a("s_barrier")
    for i in range(NKA0, NKA): kload(i)
    a("s_branch L_kb")
    a("L_c_start:")
    a("s_setprio 3")
    kload(0); kload(1)
    second_batch()
    if pref:
        a(f"""
        s_getpc_b64 s[52:53]
        L_pc0:
        s_sub_u32 s52, s52, L_pc0 - {NAME}_kernel
        s_subb_u32 s53, s53, 0
        s_mov_b32 s54, L_codeend - {NAME}_kernel
        s_mov_b32 s55, 0x20000
        s_lshl_b32 s41, s3, 11
        buffer_load_dwordx4 v[252:255], v3, s[52:55], s41 offen
        buffer_load_dwordx4 v[252:255], v3, s[52:55], s41 offen offset:1024
        """)
    a("s_waitcnt lgkmcnt(0)")
    lds_clear()
    a("s_barrier")
    for i in range(2, NKA): kload(i)
    common_setup()
    a("L_kb:")
    for i in range(NKA, 16): kload(i)
    a(f"""
    s_cmp_ge_u32 s2, 208
    s_cbranch_scc1 L_dec_c
    s_sub_u32 s41, s2, 46
    s_mul_i32 s62, s41, 57
    s_lshr_b32 s62, s62, 9
    s_mul_i32 s60, s62, 9
    s_sub_u32 s60, s41, s60
    s_add_u32 s59, s62, 16
    s_cmp_ge_u32 s2, 46
    s_cselect_b32 s22, 5308416, 0
    s_cselect_b32 s62, s62, 0
    s_branch L_dec_j
    L_dec_c:
    """)
    if xl:
        a("""
        s_sub_u32 s41, s2, 208
        s_lshr_b32 s60, s41, 3
        s_and_b32 s62, s41, 7
        s_lshl_b32 s62, s62, 1
        s_cmp_ge_u32 s60, 3
        s_cselect_b32 s41, 3, 0
        s_addc_u32 s62, s62, 0
        s_sub_u32 s60, s60, s41
        s_mul_i32 s60, s60, 3
        """)
    else:
        a("""
        s_sub_u32 s41, s2, 208
        s_mul_i32 s62, s41, 43
        s_lshr_b32 s62, s62, 7
        s_mul_i32 s60, s62, 3
        s_sub_u32 s60, s41, s60
        s_mul_i32 s60, s60, 3
        """)
    a(f"""
    s_mov_b32 s59, s62
    s_mov_b32 s22, 4718592
    L_dec_j:
    s_lshl_b32 s61, s62, 3
    s_add_u32 s61, s61, s3
    s_mul_i32 s61, s61, {32*1152}
    s_lshl_b32 s41, s60, 7
    s_add_u32 s61, s61, s41
    s_add_u32 s35, s61, 9216
    s_add_u32 s36, s61, 18432
    s_add_u32 s37, s61, 27648
    v_lshrrev_b32 v16, 4, v1
    v_lshlrev_b32 v16, 10, v16
    v_and_b32 v20, 15, v1
    v_lshl_add_u32 v16, v20, 4, v16
    s_bfe_u32 s41, s69, 0x40002
    s_lshl_b32 s41, s41, 12
    s_lshr_b32 s63, s69, 6
    s_lshl_b32 s63, s63, 8
    s_add_u32 s63, s63, s41
    s_add_u32 s63, s63, {Y1}
    v_lshrrev_b32 v17, 4, v1
    v_bfe_u32 v20, v1, 2, 1
    v_lshl_add_u32 v17, v20, 2, v17
    v_lshlrev_b32 v17, 4, v17
    v_and_b32 v20, 3, v1
    v_lshl_add_u32 v7, v20, 12, v17
    v_lshl_add_u32 v17, v20, 8, v17
    v_bfe_u32 v20, v1, 3, 1
    v_mul_u32_u24 v20, {72*1024}, v20
    v_add_u32 v17, v17, v20
    s_lshl_b32 s64, s62, 12
    s_lshl_b32 s41, s3, 9
    s_and_b32 s41, s41, 0xc00
    s_add_u32 s64, s64, s41
    s_and_b32 s41, s3, 1
    s_lshl_b32 s41, s41, 7
    s_add_u32 s64, s64, s41
    s_add_u32 s64, s64, {Y1 + 64*1024}
    v_lshrrev_b32 v20, 3, v1
    v_lshlrev_b32 v20, 6, v20
    v_and_b32 v21, 7, v1
    v_lshl_add_u32 v20, v21, 1, v20
    s_lshl_b32 s41, s3, 9
    v_add_u32 v20, s41, v20
    v_and_b32 v21, 1, v1
    v_lshlrev_b32 v21, 8, v21
    v_lshrrev_b32 v22, 4, v1
    v_lshl_add_u32 v21, v22, 5, v21
    v_bfe_u32 v22, v1, 1, 1
    v_lshl_add_u32 v21, v22, 4, v21
    v_add_u32 v21, s41, v21
    s_mov_b32 s65, {spin}
    s_cmp_lt_u32 s2, 208
    s_cbranch_scc1 L_v_ab
    s_setprio 3
    """)
    for t in range(NVA, 16): vload(t)
    a("L_v_ab:")
    stamp("kbiss")
    a("s_cmp_lt_u32 s3, 4"); a("s_cbranch_scc1 L_np1")
    a("buffer_load_dwordx4 v[244:247], v16, s[24:27], s63 offen sc1")
    a("L_np1:")
    a("s_setprio 2")
    for t in range(NVA): vload(t)
    a("s_cmp_ge_u32 s3, 4"); a("s_cbranch_scc1 L_np2")
    a("L_qre:")
    a("buffer_load_dwordx4 v[244:247], v16, s[24:27], s63 offen sc1")
    a("s_setprio 0")
    a("s_waitcnt vmcnt(0)")
    a("s_branch L_qchk")
    a("L_np2:")
    a("s_sub_u32 s41, s2, 64"); a("s_cmp_ge_u32 s41, 144"); a("s_cbranch_scc1 L_np3")
    a("s_cmp_lg_u32 s3, 7"); a("s_cbranch_scc1 L_np3")
    s1publish("b")
    a("s_setprio 0")
    a(f"s_waitcnt vmcnt({NVA+1})")
    a("s_branch L_qchk")
    a("L_np3:")
    a(f"s_setprio 0")
    stamp("vissued")
    a(f"s_waitcnt vmcnt({NVA})")
    stamp("qw")
    a("L_qchk:")
    check(244, 22)
    a(f"""
    s_cbranch_vccz L_qok
    s_sub_u32 s65, s65, 1
    s_cbranch_scc0 L_qre
    L_qok:
    """)
    stamp("qok")
    for r in range(4): a(f"ds_write_b16_d16_hi v20, v{244+r} offset:{QL+16*r}")
    a(f"ds_read_b128 v[24:27], v21 offset:{QL}")
    a(f"ds_read_b128 v[28:31], v21 offset:{QL+128}")
    a(f"""
    v_bfe_u32 v19, v1, 1, 2
    v_lshlrev_b32 v19, 6, v19
    v_and_b32 v16, 1, v1
    v_lshl_add_u32 v19, v16, 5, v19
    v_lshrrev_b32 v16, 4, v1
    v_lshl_add_u32 v19, v16, 3, v19
    v_bfe_u32 v22, v1, 3, 1
    v_lshl_add_u32 v19, v22, 2, v19
    s_lshl_b32 s41, s3, 9
    v_add_u32 v19, s41, v19
    v_lshl_add_u32 v16, v22, 2, v16
    v_lshlrev_b32 v16, 6, v16
    v_add_u32 v16, s41, v16
    v_and_b32 v22, 1, v1
    v_lshlrev_b32 v22, 4, v22
    v_mov_b32 v23, 0xffff
    v_lshlrev_b32 v22, v22, v23
    v_bfe_u32 v23, v1, 1, 2
    """)
    for i in range(4):
        a(f"v_cmp_eq_u32 vcc, {i}, v23")
        a(f"v_cndmask_b32 v{12+i}, 0, v22, vcc")
    a("""
    s_mov_b32 s66, 0x000f000f
    s_mov_b32 s67, 0x000f000f
    s_waitcnt lgkmcnt(0)
    """)
    for t in range(4):
        for ip in range(2):
            for r in range(4):
                a(f"v_cndmask_b32 v{ACC+(t*2+ip)*4+r}, 0, v{24+4*ip+r}, s[66:67]")
        if t < 3: a("s_lshl_b64 s[66:67], s[66:67], 4")
    for G4 in range(4):
        for ip in range(2):
            for par in range(2):
                G = par * 4 + G4; i = G * 2 + ip
                A = ACC + (G4 * 2 + ip) * 4; Dd = 20 + 4 * par
                C = "0" if (G4 == 0 and ip == 0) else f"v[{Dd}:{Dd+3}]"
                a(f"v_mfma_f32_16x16x32_bf16 v[{Dd}:{Dd+3}], v[{A}:{A+3}], v[{K0+4*i}:{K0+4*i+3}], {C}")
    stamp("qkmf")
    a(f"""
    s_mov_b32 s66, 0xaaaaaaaa
    s_mov_b32 s67, 0xaaaaaaaa
    s_mov_b32 s41, {hex(f2u(128 ** -0.5))}
    v_add_f32_dpp v20, v22, v20 quad_perm:[1,0,3,2] row_mask:0xf bank_mask:0xf
    v_add_f32_dpp v21, v23, v21 quad_perm:[1,0,3,2] row_mask:0xf bank_mask:0xf
    v_add_f32_dpp v26, v24, v26 quad_perm:[1,0,3,2] row_mask:0xf bank_mask:0xf
    v_add_f32_dpp v27, v25, v27 quad_perm:[1,0,3,2] row_mask:0xf bank_mask:0xf
    v_cndmask_b32 v20, v20, v26, s[66:67]
    v_cndmask_b32 v21, v21, v27, s[66:67]
    v_cvt_pk_bf16_f32 v22, v20, v21
    v_lshlrev_b32 v20, 16, v22
    v_and_b32 v21, s50, v22
    v_mul_f32 v20, s41, v20
    v_mul_f32 v21, s41, v21
    v_cvt_pk_bf16_f32 v22, v20, v21
    s_mov_b32 s41, {hex(f2u(1.4426950408889634))}
    v_lshlrev_b32 v20, 16, v22
    v_and_b32 v21, s50, v22
    v_mul_f32 v20, s41, v20
    v_mul_f32 v21, s41, v21
    v_mov_b32 v22, v20
    v_mov_b32 v23, v21
    """)
    wave_red("v_max_f32", [22, 23])
    a(f"""
    s_lshr_b32 s66, s69, 6
    s_bfe_u32 s67, s69, 0x40002
    v_readlane_b32 s52, v22, 63
    v_readlane_b32 s53, v23, 63
    s_lshl_b32 s67, s67, 2
    s_add_u32 s66, s66, s67
    s_and_b32 s67, s69, 3
    s_and_b32 s52, s52, s51
    s_and_b32 s53, s53, s51
    v_subrev_f32 v20, s52, v20
    v_subrev_f32 v21, s53, v21
    v_exp_f32 v20, v20
    v_exp_f32 v21, v21
    v_cvt_pk_bf16_f32 v22, v20, v20
    v_cvt_pk_bf16_f32 v23, v21, v21
    ds_write_b32 v19, v22 offset:{PL}
    ds_write_b32 v19, v23 offset:{PL+256}
    v_mov_b32 v30, s52
    v_mov_b32 v31, s53
    s_lshl_b32 s68, s3, 5
    """)
    wave_red("v_add_f32", [20, 21])
    a(f"""
    s_mov_b32 s52, 0xaaaaaaaa
    s_mov_b32 s53, 0xaaaaaaaa
    v_cndmask_b32 v24, v30, v31, s[52:53]
    v_cndmask_b32 v25, v20, v21, s[52:53]
    v_and_or_b32 v26, v24, s51, v10
    v_and_or_b32 v27, v25, s51, v11
    v_and_or_b32 v24, v24, s51, v8
    v_and_or_b32 v25, v25, s51, v9
    v_and_b32 v22, 16, v3
    v_add_u32 v22, s68, v22
    s_mov_b32 exec_lo, 0
    s_mov_b32 exec_hi, 0xc0000000
    ds_write_b128 v22, v[24:27] offset:{MX}
    s_mov_b64 exec, -1
    s_setprio 1
    """)
    stamp("qk")
    a("s_cmp_ge_u32 s2, 208"); a("s_cbranch_scc1 L_nov2")
    for t in range(NVA, 16):
        vload(t)
    a("s_setprio 0")
    a("buffer_load_dwordx4 v[248:251], v17, s[24:27], s64 offen sc1")
    s3load(0)
    a("s_branch L_nov3")
    a("L_nov2:")
    a("s_setprio 0")
    s3load(0); s3load(1); s3load(2)
    a("s_waitcnt vmcnt(12)")
    a("L_nov3:")
    stamp("allissued")
    if ssel and "vlanded" in ssel:
        a("s_waitcnt vmcnt(5)"); stamp("vlanded")
        a("s_waitcnt vmcnt(0)"); stamp("landed")
    a(f"""
    s_cmp_lg_u32 s3, 5
    s_cbranch_scc1 L_nofac
    v_and_b32 v22, 0xf0, v3
    v_bfe_u32 v23, v1, 1, 3
    v_and_b32 v24, 1, v1
    v_lshlrev_b32 v23, 2, v23
    v_lshl_add_u32 v23, v24, 5, v23
    s_lshl_b32 s39, s66, 7
    s_lshl_b32 s68, s67, 5
    s_add_u32 s39, s39, s68
    s_add_u32 s39, s39, {ST}
    L_stchk:
    ds_read_b128 v[244:247], v22 offset:{MX}
    s_waitcnt lgkmcnt(0)
    """)
    check(244, 24)
    a(f"""
    s_cbranch_vccz L_stok
    s_sub_u32 s65, s65, 1
    s_cbranch_scc0 L_stchk
    L_stok:
    v_and_b32 v244, s51, v244
    v_max_f32_dpp v24, v244, v244 row_ror:8 row_mask:0xf bank_mask:0xf
    v_max_f32_dpp v24, v24, v24 row_ror:4 row_mask:0xf bank_mask:0xf
    v_max_f32_dpp v24, v24, v24 row_ror:2 row_mask:0xf bank_mask:0xf
    v_sub_f32 v244, v244, v24
    v_exp_f32 v244, v244
    v_mul_f32 v25, v245, v244
    v_add_f32_dpp v25, v25, v25 row_ror:8 row_mask:0xf bank_mask:0xf
    v_add_f32_dpp v25, v25, v25 row_ror:4 row_mask:0xf bank_mask:0xf
    v_add_f32_dpp v25, v25, v25 row_ror:2 row_mask:0xf bank_mask:0xf
    s_mov_b64 exec, 0xffff
    ds_write_b32 v23, v244 offset:{LS}
    s_mov_b64 exec, -1
    v_and_or_b32 v246, v24, s51, v10
    v_and_or_b32 v247, v25, s51, v11
    v_and_or_b32 v244, v24, s51, v8
    v_and_or_b32 v245, v25, s51, v9
    L_nofac:
    """)
    a(f"""
    ds_read_b128 v[32:35], v16 offset:{PL}
    ds_read_b128 v[36:39], v16 offset:{PL+16}
    ds_read_b128 v[40:43], v16 offset:{PL+32}
    ds_read_b128 v[44:47], v16 offset:{PL+48}
    s_waitcnt lgkmcnt(0)
    """)
    def bbuild(t):
        b = 48 + 4 * (t % 3)
        for i in range(4): a(f"v_and_b32 v{b+i}, v{12+i}, v{32+t}")
    a("s_cmp_ge_u32 s2, 208")
    bbuild(0)
    for t in range(16):
        if t + 1 < 16: bbuild(t + 1)
        cover = {0: 5, 6: 9, 10: 11, 12: 13, 14: 14, 15: 15}
        if t in cover:
            a(f"s_cbranch_scc1 L_pvw{t}"); a(f"s_waitcnt vmcnt({15-cover[t]+5})"); a(f"L_pvw{t}:")
        b = 48 + 4 * (t % 3)
        C = "0" if t == 0 else "v[60:63]"
        a(f"v_mfma_f32_16x16x32_bf16 v[60:63], v[{V0+4*t}:{V0+4*t+3}], v[{b}:{b+3}], {C}")
    stamp("pv")
    a("L_or:")
    a(f"""
    v_bfe_u32 v25, v1, 3, 1
    v_lshlrev_b32 v24, 11, v25
    v_lshlrev_b32 v25, 5, v25
    v_lshrrev_b32 v26, 4, v1
    v_lshl_add_u32 v24, v26, 7, v24
    v_and_b32 v26, 7, v1
    v_lshl_add_u32 v24, v26, 4, v24
    s_lshl_b32 s41, s66, 12
    s_lshl_b32 s68, s67, 9
    ds_write_b128 v18, v[60:63] offset:{OR}
    s_add_u32 s41, s41, s68
    s_add_u32 s41, s41, {OP}
    s_cmp_lg_u32 s3, 5
    s_cbranch_scc1 L_nost
    s_mov_b64 exec, 3
    buffer_store_dwordx4 v[244:247], v3, s[24:27], s39 offen {'' if xl == 2 else 'sc1'}
    s_mov_b64 exec, -1
    """)
    stamp("stpub")
    a(f"""
    L_nost:
    s_waitcnt lgkmcnt(0)
    s_barrier
    s_cmp_lg_u32 s3, 6
    s_cbranch_scc1 L_s3go
    s_setprio 3
    ds_read_b128 v[32:35], v25 offset:{LS}
    ds_read_b128 v[36:39], v25 offset:{LS+16}
    """)
    R = K0
    red_sum(3, OR, R)
    for p in range(8):
        if p in (0, 2, 4, 6): a(f"s_waitcnt lgkmcnt({6-p})")
        for r in range(4):
            if p == 0: a(f"v_mul_f32 v{R+r}, v{R+r}, v32")
            else: a(f"v_fmac_f32 v{R+r}, v{R+4*p+r}, v{32+p}")
    tag(R)
    a(f"buffer_store_dwordx4 v[{R}:{R+3}], v24, s[24:27], s41 offen {'' if xl == 2 else 'sc1'}")
    stamp("opub")
    if ssel and "opack" in ssel:
        a("s_waitcnt vmcnt(0)"); stamp("opack")
    a(f"""
    s_setprio 0
    L_s3go:
    s_cmp_lt_u32 s2, 46
    s_cbranch_scc1 L_final
    v_and_b32 v28, 3, v1
    v_mul_u32_u24 v28, {36*4096}, v28
    v_bfe_u32 v21, v1, 4, 1
    v_lshl_add_u32 v28, v21, 13, v28
    v_bfe_u32 v21, v1, 2, 1
    v_lshl_add_u32 v28, v21, 12, v28
    v_lshrrev_b32 v21, 5, v1
    v_lshl_add_u32 v28, v21, 5, v28
    v_bfe_u32 v21, v1, 3, 1
    v_lshl_add_u32 v28, v21, 4, v28
    s_add_u32 s40, s60, s3
    s_lshl_b32 s40, s40, 14
    s_lshl_b32 s66, s59, 6
    s_add_u32 s40, s40, s66
    s_add_u32 s40, s40, {FP}
    s_lshl_b32 s66, s3, 13
    v_add_u32 v29, s66, v3
    s_cmp_ge_u32 s2, 208
    s_cbranch_scc1 L_ctail
    s_waitcnt vmcnt(4)
    L_guchk:
    """)
    check(248, 22)
    a(f"""
    s_cbranch_vccz L_guok
    s_sub_u32 s65, s65, 1
    s_cbranch_scc1 L_guok
    buffer_load_dwordx4 v[248:251], v17, s[24:27], s64 offen sc1
    s_waitcnt vmcnt(0)
    s_branch L_guchk
    L_guok:
    s_mov_b32 s41, {hex(f2u(2*0.7978845608028654*1.4426950408889634*0.044715))}
    v_mov_b32 v40, {hex(f2u(2*0.7978845608028654*1.4426950408889634))}
    v_and_b32 v32, s50, v248
    v_and_b32 v33, s50, v249
    v_and_b32 v34, s50, v250
    v_and_b32 v35, s50, v251
    v_mov_b32 v38, v32
    v_mov_b32 v39, v33
    v_mov_b32_dpp v32, v34 row_ror:8 row_mask:0xf bank_mask:0xc
    v_mov_b32_dpp v33, v35 row_ror:8 row_mask:0xf bank_mask:0xc
    v_mov_b32_dpp v34, v38 row_ror:8 row_mask:0xf bank_mask:0x3
    v_mov_b32_dpp v35, v39 row_ror:8 row_mask:0xf bank_mask:0x3
    """)
    for r in range(2): a(f"v_mul_f32 v{36+r}, v{32+r}, v{32+r}")
    for r in range(2): a(f"v_fma_f32 v{36+r}, v{36+r}, s41, v40")
    for r in range(2): a(f"v_mul_f32 v{36+r}, v{36+r}, v{32+r}")
    for r in range(2): a(f"v_exp_f32 v{36+r}, -v{36+r}")
    for r in range(2): a(f"v_add_f32 v{36+r}, 1.0, v{36+r}")
    for r in range(2): a(f"v_rcp_f32 v{36+r}, v{36+r}")
    for r in range(2): a(f"v_mul_f32 v{36+r}, v{36+r}, v{32+r}")
    a("""
    v_cvt_pk_bf16_f32 v32, v36, v37
    v_lshlrev_b32 v36, 16, v32
    v_and_b32 v37, s50, v32
    v_mul_f32 v36, v36, v34
    v_mul_f32 v37, v37, v35
    v_cvt_pk_bf16_f32 v32, v36, v37
    v_mov_b32_dpp v33, v32 row_ror:8 row_mask:0xf bank_mask:0xf
    v_cndmask_b32 v20, v32, 0, s[32:33]
    v_cndmask_b32 v23, 0, v32, s[32:33]
    v_cndmask_b32 v21, v33, 0, s[32:33]
    v_cndmask_b32 v22, 0, v33, s[32:33]
    """)
    def transp(src, dst):
        for e in range(8):
            i = e >> 1; sel = 55 + (e & 1)
            for jj in range(2):
                a(f"v_perm_b32 v{dst+2*e+jj}, v{src+4*(2*jj+1)+i}, v{src+4*(2*jj)+i}, s{sel}")
    def bmask():
        a("""
        v_cndmask_b32 v22, 0, v20, s[32:33]
        v_cndmask_b32 v23, 0, v21, s[32:33]
        v_cndmask_b32 v20, v20, 0, s[32:33]
        v_cndmask_b32 v21, v21, 0, s[32:33]
        """)
    accs = [ACC, ACC + 16, K0 + 48]
    def mm(blk):
        for u in range(2):
            for p in range(4):
                e = 2 * p + u
                t = K0 + 16 * blk + 2 * e; d = accs[blk] + 4 * p
                C = "0" if u == 0 else f"v[{d}:{d+3}]"
                a(f"v_mfma_f32_16x16x16_bf16 v[{d}:{d+3}], v[{t}:{t+1}], v[{20+2*u}:{21+2*u}], {C}")
    a("""
    s_mov_b32 s34, 1
    s_sub_u32 s41, s3, 5
    s_cmp_lt_u32 s41, 2
    s_cbranch_scc1 L_dn0
    s_waitcnt vmcnt(0)
    L_dn0:
    s_waitcnt vmcnt(1)
    """)
    stamp("s3data")
    transp(S3B[0], K0)
    mm(0)
    dense(accs[0])
    a(f"ds_write_b128 v18, v[{accs[0]}:{accs[0]+3}] offset:{RED}")
    a("s_branch L_s3red")
    a(f"""
    L_ctail:
    s_lshl_b32 s66, s62, 14
    s_lshr_b32 s41, s3, 2
    s_lshl_b32 s67, s41, 11
    s_add_u32 s66, s66, s67
    s_and_b32 s67, s3, 3
    s_lshl_b32 s67, s67, 7
    s_add_u32 s66, s66, s67
    s_add_u32 s66, s66, {OP}
    s_mov_b32 s65, {spin}
    s_mov_b32 s34, 3
    """)
    a("s_waitcnt vmcnt(0)")
    transp(S3B[0], K0); transp(S3B[1], K0 + 16); transp(S3B[2], K0 + 32)
    stamp("cready")
    a(f"""
    s_lshl_b32 s67, s62, 9
    s_lshr_b32 s41, s3, 2
    s_lshl_b32 s41, s41, 4
    s_add_u32 s67, s67, s41
    s_add_u32 s67, s67, {ST}
    v_and_b32 v19, 3, v1
    v_lshlrev_b32 v19, 7, v19
    v_bfe_u32 v20, v1, 2, 2
    v_lshl_add_u32 v19, v20, 5, v19
    v_lshl_add_u32 v16, v20, 9, v7
    v_xor_b32 v17, 0x200, v16
    L_schk:
    buffer_load_dwordx4 v[32:35], v19, s[24:27], s67 offen sc1
    s_waitcnt vmcnt(0)
    """)
    check(32, 20)
    a(f"""
    s_cbranch_vccz L_sok
    s_sub_u32 s65, s65, 1
    s_cbranch_scc0 L_schk
    L_sok:
    buffer_load_dwordx4 v[36:39], v16, s[24:27], s66 offen sc1
    buffer_load_dwordx4 v[40:43], v17, s[24:27], s66 offen sc1
    v_and_b32 v32, s51, v32
    v_max_f32_dpp v24, v32, v32 row_ror:8 row_mask:0xf bank_mask:0xf
    v_max_f32_dpp v24, v24, v24 row_ror:4 row_mask:0xf bank_mask:0xf
    v_sub_f32 v24, v32, v24
    v_exp_f32 v24, v24
    v_mul_f32 v25, v24, v33
    v_add_f32_dpp v25, v25, v25 row_ror:8 row_mask:0xf bank_mask:0xf
    v_add_f32_dpp v25, v25, v25 row_ror:4 row_mask:0xf bank_mask:0xf
    v_rcp_f32 v25, v25
    v_mul_f32 v24, v24, v25
    v_mov_b32_dpp v25, v24 row_shl:4 row_mask:0xf bank_mask:0x5
    v_mov_b32_dpp v25, v24 row_shr:4 row_mask:0xf bank_mask:0xa
    """)
    stamp("sok")
    a("""
    L_ochk:
    s_waitcnt vmcnt(0)
    """)
    check(36, 20); check(40, 22, 52)
    a("""
    s_cbranch_vccz L_ook
    buffer_load_dwordx4 v[36:39], v16, s[24:27], s66 offen sc1
    buffer_load_dwordx4 v[40:43], v17, s[24:27], s66 offen sc1
    s_sub_u32 s65, s65, 1
    s_cbranch_scc0 L_ochk
    L_ook:
    """)
    for r in range(4): a(f"v_mul_f32 v{32+r}, v24, v{36+r}")
    for r in range(4): a(f"v_fmac_f32 v{32+r}, v25, v{40+r}")
    for r in range(4): a(f"v_add_f32_dpp v{32+r}, v{32+r}, v{32+r} row_ror:8 row_mask:0xf bank_mask:0xf")
    stamp("ook")
    a("""
    v_cvt_pk_bf16_f32 v20, v32, v33
    v_cvt_pk_bf16_f32 v21, v34, v35
    """)
    bmask()
    mm(0); mm(1); mm(2)
    for blk in range(3):
        dense(accs[blk])
        a(f"ds_write_b128 v18, v[{accs[blk]}:{accs[blk]+3}] offset:{RED+blk*8192}")
    a(f"""
    L_s3red:
    s_waitcnt lgkmcnt(0)
    s_barrier
    s_cmp_ge_u32 s3, s34
    s_cbranch_scc1 L_fin
    """)
    R = ACC
    red_sum(29, RED, R); red_add(R); tag(R)
    a(f"buffer_store_dwordx4 v[{R}:{R+3}], v28, s[24:27], s40 offen sc1")
    stamp("s3pub")
    a("s_branch L_fin")
    a(f"""
    L_final:
    s_cmp_ge_u32 s2, 36
    s_cbranch_scc1 L_epoch
    s_cmp_ge_u32 s3, 4
    s_cbranch_scc1 L_fin
    s_mul_i32 s66, s2, 57
    s_lshr_b32 s66, s66, 9
    s_mul_i32 s67, s66, 9
    s_sub_u32 s67, s2, s67
    s_mul_i32 s66, s66, 1152
    s_lshl_b32 s67, s67, 7
    s_add_u32 s66, s66, s67
    s_lshr_b32 s67, s3, 1
    s_lshl_b32 s67, s67, 6
    s_add_u32 s66, s66, s67
    s_and_b32 s67, s3, 1
    s_lshl_b32 s67, s67, 3
    s_add_u32 s66, s66, s67
    v_and_b32 v20, 3, v1
    v_lshlrev_b32 v21, 4, v20
    v_lshrrev_b32 v22, 4, v1
    v_lshl_add_u32 v21, v22, 1, v21
    buffer_load_ushort v19, v21, s[4:7], s66 offen
    v_and_b32 v23, 15, v1
    v_lshlrev_b32 v24, 6, v23
    v_lshl_add_u32 v24, v22, 4, v24
    v_and_b32 v25, 1, v1
    v_lshlrev_b32 v25, 6, v25
    v_lshl_add_u32 v25, v22, 4, v25
    s_lshl_b32 s67, s2, 2
    s_add_u32 s67, s67, s3
    s_lshl_b32 s67, s67, 12
    s_add_u32 s67, s67, {FP}
    v_cmp_gt_u32 s[60:61], 2, v23
    v_cmp_eq_u32 s[62:63], 1, v20
    v_cmp_eq_u32 s[44:45], 2, v20
    v_cmp_eq_u32 s[46:47], 3, v20
    s_mov_b32 s40, 0xaaaaaaaa
    s_mov_b32 s41, 0xaaaaaaaa
    s_mov_b32 s42, 0xcccccccc
    s_mov_b32 s43, 0xcccccccc
    s_mov_b32 s65, {spin}
    """)
    a("""
    L_gchk:
    buffer_load_dwordx4 v[36:39], v24, s[24:27], s67 offen offset:1024 sc1
    buffer_load_dwordx4 v[40:43], v25, s[24:27], s67 offen offset:2048 sc1
    s_waitcnt vmcnt(0)
    """)
    check(36, 26); check(40, 28, 52)
    a("""
    s_cbranch_vccz L_gok
    s_sub_u32 s65, s65, 1
    s_cbranch_scc0 L_gchk
    L_gok:
    buffer_load_dwordx4 v[32:35], v24, s[24:27], s67 offen sc1
    """)
    for r in range(4): a(f"v_cndmask_b32 v{40+r}, 0, v{40+r}, s[60:61]")
    for r in range(4): a(f"v_add_f32 v{36+r}, v{36+r}, v{40+r}")
    for m in ("row_ror:8", "row_ror:4", "row_ror:2", "row_ror:1"):
        for r in range(4): a(f"v_add_f32_dpp v{36+r}, v{36+r}, v{36+r} {m} row_mask:0xf bank_mask:0xf")
    a(f"""
    v_cndmask_b32 v36, v36, v37, s[62:63]
    v_cndmask_b32 v36, v36, v38, s[44:45]
    v_cndmask_b32 v36, v36, v39, s[46:47]
    v_cvt_pk_bf16_f32 v36, v36, v36
    v_and_b32 v36, s50, v36
    v_mul_f32 v37, {hex(f2u(-1.4426950408889634))}, v36
    v_exp_f32 v37, v37
    v_lshlrev_b32 v18, 16, v19
    v_add_f32 v37, 1.0, v37
    v_rcp_f32 v37, v37
    v_cmp_gt_u32 s[60:61], 4, v23
    v_mul_f32 v37, v37, v36
    v_cvt_pk_bf16_f32 v37, v37, v37
    v_and_b32 v37, s50, v37
    """)
    stamp("gok")
    a("""
    L_fchk:
    s_waitcnt vmcnt(0)
    """)
    check(32, 26)
    a("""
    s_cbranch_vccz L_fok
    buffer_load_dwordx4 v[32:35], v24, s[24:27], s67 offen sc1
    s_sub_u32 s65, s65, 1
    s_cbranch_scc0 L_fchk
    L_fok:
    """)
    stamp("fok")
    for m in ("row_ror:8", "row_ror:4"):
        for r in range(4): a(f"v_add_f32_dpp v{32+r}, v{32+r}, v{32+r} {m} row_mask:0xf bank_mask:0xf")
    a(f"""
    v_add_f32_dpp v32, v32, v32 quad_perm:[1,0,3,2] row_mask:0xf bank_mask:0xf
    v_add_f32_dpp v33, v33, v33 quad_perm:[1,0,3,2] row_mask:0xf bank_mask:0xf
    v_add_f32_dpp v34, v34, v34 quad_perm:[1,0,3,2] row_mask:0xf bank_mask:0xf
    v_add_f32_dpp v35, v35, v35 quad_perm:[1,0,3,2] row_mask:0xf bank_mask:0xf
    v_cndmask_b32 v32, v32, v33, s[40:41]
    v_cndmask_b32 v34, v34, v35, s[40:41]
    v_add_f32_dpp v32, v32, v32 quad_perm:[2,3,0,1] row_mask:0xf bank_mask:0xf
    v_add_f32_dpp v34, v34, v34 quad_perm:[2,3,0,1] row_mask:0xf bank_mask:0xf
    v_cndmask_b32 v32, v32, v34, s[42:43]
    v_cvt_pk_bf16_f32 v32, v32, v32
    v_and_b32 v32, s50, v32
    v_mul_f32 v32, v32, v37
    v_cvt_pk_bf16_f32 v32, v32, v32
    v_and_b32 v32, s50, v32
    v_add_f32 v32, v32, v18
    v_cvt_pk_bf16_f32 v32, v32, v32
    s_mov_b64 exec, s[60:61]
    buffer_store_short v32, v21, s[28:31], s66 offen
    s_mov_b64 exec, -1
    s_branch L_fin
    L_epoch:
    s_cmp_lg_u32 s2, 45
    s_cbranch_scc1 L_fin
    s_cmp_lg_u32 s3, 5
    s_cbranch_scc1 L_fin
    v_mov_b32 v20, 0
    v_lshlrev_b32 v24, 5, v1
    s_mov_b32 s65, {spin}
    s_mov_b32 s44, {ST}
    s_mov_b32 s45, {ST+2048}
    s_mov_b32 s46, {ST+4096}
    s_mov_b32 s47, {ST+6144}
    L_echk:
    """)
    for p in range(4): a(f"buffer_load_dwordx4 v[{32+4*p}:{35+4*p}], v24, s[24:27], s{44+p} offen sc1")
    a("s_waitcnt vmcnt(0)")
    check(32, 26)
    for p in range(1, 4): check(32 + 4 * p, 26, 52)
    a(f"""
    s_cbranch_vccz L_eok
    {"s_branch L_eok" if xl == 2 else ""}
    s_sleep 8
    s_sub_u32 s65, s65, 1
    s_cbranch_scc0 L_echk
    L_eok:
    v_mov_b32 v21, s48
    s_mov_b64 exec, 1
    buffer_store_dword v21, v20, s[24:27], 0 offen sc1
    s_mov_b64 exec, -1
    L_fin:
    """)
    if exfil:
        a(f"s_cmp_lg_u32 s3, {exfil[2]}"); a("s_cbranch_scc1 L_end")
        a(f"s_cmp_lg_u32 s2, {exfil[1]}"); a("s_cbranch_scc1 L_end")
        a("s_waitcnt vmcnt(0)")
        a("s_memrealtime s[100:101]")
        a("s_waitcnt lgkmcnt(0)")
        if exfil[0] == "end": a("s_mov_b32 s96, s100")
        a("s_sub_u32 s96, s96, s98"); a("s_lshl_b32 s96, s96, 2"); a("s_min_u32 s96, s96, 50000")
        a("L_xf:"); a("s_memrealtime s[94:95]"); a("s_waitcnt lgkmcnt(0)"); a("s_sub_u32 s94, s94, s100"); a("s_cmp_lt_u32 s94, s96"); a("s_cbranch_scc1 L_xf")
    if diag:
        if clk: stamp("clk1", "s_memtime")
        stamp("end")
        a("s_waitcnt lgkmcnt(0)")
        a("s_lshl_b32 s41, s2, 3"); a("s_add_u32 s41, s41, s3"); a("s_lshl_b32 s41, s41, 7"); a(f"s_add_u32 s41, s41, {TS_OFF}")
        a("v_mov_b32 v20, 0")
        for k in range(16):
            a(f"v_mov_b32 v22, s{70+2*k}"); a(f"v_mov_b32 v23, s{71+2*k}")
            a(f"buffer_store_dwordx2 v[22:23], v20, s[24:27], s41 offen offset:{k*8}")
    a("L_end:"); a("s_endpgm"); a("L_codeend:")
    a('.section .rodata,"a"'); a(".p2align 6"); a(f".amdhsa_kernel {NAME}_kernel")
    a("  .amdhsa_next_free_vgpr 256"); a("  .amdhsa_next_free_sgpr 102"); a("  .amdhsa_accum_offset 256")
    a("  .amdhsa_group_segment_fixed_size 0"); a("  .amdhsa_kernarg_size 96"); a("  .amdhsa_user_sgpr_count 2")
    a("  .amdhsa_user_sgpr_kernarg_segment_ptr 1"); a("  .amdhsa_system_sgpr_workgroup_id_x 1"); a(".end_amdhsa_kernel")
    return a.finalize(), ts
if __name__ == "__main__":
    open("k.s", "w").write(gen()[0])
    import sys
    sets = {"a": ["start","ln","kaiss","s1data","s1mf","s1pub","s1pubb","kbiss","vissued","qok","qkmf","qk","allissued","end"],
            "c": ["start","allissued","stpub","pv","opub","opack","s3data","cready","sok","ook","s3pub","gok","fok","end"],
            "d": ["start","ln","s1data","kbiss","vissued","qok","qk","allissued","vlanded","landed","pv","opub","ook","s3pub","fok","end"],
            "e": ["start","kbiss","s1inb","s1okb","s1pubb","vissued","qw","qok","qk","allissued","pv","opub","ook","s3pub","fok","end"],
            "b": ["start","s1pub","kbiss","vissued","qok","qk","allissued","pv","opub","s3data","sok","ook","s3pub","fok","end"]}
    for k, v in sets.items():
        txt, ts = gen(diag=True, ssel=v)
        open(f"kd{k}.s", "w").write(txt); open(f"kd{k}.s.names", "w").write(",".join(ts))

    open("k_xl1.s", "w").write(gen(xl=1)[0])
    open("k_xl2.s", "w").write(gen(xl=2, spin=300)[0])
    txt, ts = gen(diag=True, ssel=sets["c"], xl=2, spin=300)
    open(f"kdcx.s", "w").write(txt); open(f"kdcx.s.names", "w").write(",".join(ts))
```
